```python
import torch

def _softmax(x, axis=-1):
    return torch.softmax(x, dim=axis)
def _gelu(x):
    return torch.nn.functional.gelu(x, approximate="tanh")
def _silu(x):
    return torch.nn.functional.silu(x)
def _sigmoid(x):
    return torch.sigmoid(x)
def _layernorm(x, axis=-1, eps=1e-5):
    m = x.mean(dim=axis, keepdim=True)
    v = x.var(dim=axis, keepdim=True, unbiased=False)
    return (x - m) / torch.sqrt(v + eps)
def _scatter_add(tgt, idx, src, axis=0):
    return tgt.clone().index_add_(axis, idx, src)
def _segment_sum(src, seg, n):
    out = torch.zeros((n,) + src.shape[1:], dtype=src.dtype)
    return out.index_add_(0, seg, src)
def _pad(x, pw):
    flat = tuple(v for pair in reversed(pw) for v in pair)
    return torch.nn.functional.pad(x, flat)

kernel_name = 'standalone__glu_gated_swiglu__prompt'

def setup_inputs():

    _w = (lambda a: (lambda t: t.to(torch.bfloat16) if t.is_floating_point() else t)(torch.as_tensor(a)))
    B, S, D, F = 1, 2048, 512, 1376
    return {
        "x": _w((lambda *s: torch.randn(*s, dtype=torch.bfloat16) * 0.05)(B, S, D)),
        "w1": _w((lambda *s: torch.randn(*s, dtype=torch.bfloat16) * 0.05)(D, F) * (2.0 / D) ** 0.5),
        "w3": _w((lambda *s: torch.randn(*s, dtype=torch.bfloat16) * 0.05)(D, F) * (2.0 / D) ** 0.5),
        "w2": _w((lambda *s: torch.randn(*s, dtype=torch.bfloat16) * 0.05)(F, D) * (2.0 / F) ** 0.5),
    }

def reference(x, w1, w3, w2):
    gate = torch.einsum("bsd,df->bsf", x, w1)
    up = torch.einsum("bsd,df->bsf", x, w3)
    h = _silu(gate) * up
    out = torch.einsum("bsf,fd->bsd", h, w2)
    return out
```

```python
import sys, argparse

NAME = "standalone__glu_gated_swiglu__prompt"

class E:
    def __init__(self):
        self.lines = []
        self.pend = []
    def __call__(self, s):
        self.lines.append("    " + s)
    def label(self, l):
        self.lines.append(l + ":")
    def c(self, s):
        self.lines.append("    ; " + s)
    def lds(self, tag, s):
        self.pend.append(tag)
        assert len(self.pend) <= 15, "lgkm overflow"
        self(s)
    def need(self, *tags):
        idx = -1
        for t in tags:
            if t in self.pend:
                idx = max(idx, self.pend.index(t))
        if idx >= 0:
            n = len(self.pend) - 1 - idx
            self(f"s_waitcnt lgkmcnt({n})")
            self.pend = self.pend[idx+1:]
    def drain(self):
        self("s_waitcnt lgkmcnt(0)")
        self.pend = []
    def text(self):
        return "\n".join(self.lines) + "\n"

def vr(a, n):
    return f"v[{a}:{a+n-1}]"

SLOT = 40960
XB, W1B, W3B = 0, 16384, 16384 + 12288

def gen(stamps=False):
    e = E()
    SX, SW1, SW3, SW2, SOUT, SDBG, SH = 20, 24, 28, 32, 36, 40, 44
    sWAVE, sXCD, sJJ, sHALF, sSLICE, sMBLK, sUST, sUCNT, sM128, sM64, sNBLK = range(50, 61)
    sT0, sT1, sT2, sT3, sN, sSLOTB, sXOFF, sWOFF, sLW, sCNT = range(61, 71)
    STAMP0 = 72
    nst = [0]
    def stamp():
        if stamps:
            e(f"s_memrealtime s[{STAMP0+2*nst[0]}:{STAMP0+2*nst[0]+1}]")
            nst[0] += 1
    def csel(dst, a, b):
        e(f"s_mov_b32 s{dst}, {b}")
        e(f"s_cmov_b32 s{dst}, {a}")
    def srd(base, ptr, nbytes):
        e(f"s_mov_b32 s{base}, s{ptr}")
        e(f"s_and_b32 s{base+1}, s{ptr+1}, 0xffff")
        e(f"s_mov_b32 s{base+2}, {nbytes}")
        e(f"s_mov_b32 s{base+3}, 0x20000")

    e("s_cmp_ge_u32 s2, 256")
    e("s_cbranch_scc1 L_end")
    e("s_load_dwordx8 s[4:11], s[0:1], 0")
    e("s_load_dwordx4 s[12:15], s[0:1], 32")
    e("s_load_dwordx2 s[16:17], s[0:1], 48")
    stamp()
    e("v_lshrrev_b32 v1, 6, v0")
    e("v_and_b32 v0, 63, v0")
    e(f"s_and_b32 s{sXCD}, s2, 7")
    e(f"v_readfirstlane_b32 s{sWAVE}, v1")
    e(f"s_lshr_b32 s{sJJ}, s2, 3")
    e(f"s_lshr_b32 s{sHALF}, s{sJJ}, 4")
    e(f"s_and_b32 s{sJJ}, s{sJJ}, 15")
    e(f"s_and_b32 s{sT0}, s{sXCD}, 3")
    e(f"s_and_b32 s{sT1}, s{sJJ}, 3")
    e(f"s_lshl_b32 s{sSLICE}, s{sT0}, 2")
    e(f"s_add_u32 s{sSLICE}, s{sSLICE}, s{sT1}")
    e(f"s_mul_i32 s{sUST}, s{sT0}, 22")
    e(f"s_mul_i32 s{sT2}, s{sT1}, 6")
    e(f"s_add_u32 s{sUST}, s{sUST}, s{sT2}")
    e(f"s_cmp_eq_u32 s{sSLICE}, 15")
    e(f"s_cselect_b32 s{sT2}, 2, 0")
    e(f"s_sub_u32 s{sUST}, s{sUST}, s{sT2}")
    e(f"s_cmp_eq_u32 s{sT1}, 3")
    e(f"s_cselect_b32 s{sUCNT}, 4, 6")
    e(f"s_cmp_eq_u32 s{sSLICE}, 14")
    e(f"s_cselect_b32 s{sUCNT}, 4, s{sUCNT}")
    e(f"s_lshl_b32 s{sMBLK}, s{sHALF}, 3")
    e(f"s_lshr_b32 s{sT0}, s{sXCD}, 2")
    e(f"s_lshl_b32 s{sT0}, s{sT0}, 2")
    e(f"s_add_u32 s{sMBLK}, s{sMBLK}, s{sT0}")
    e(f"s_lshr_b32 s{sT0}, s{sJJ}, 2")
    e(f"s_add_u32 s{sMBLK}, s{sMBLK}, s{sT0}")
    e(f"s_lshl_b32 s{sM128}, s{sHALF}, 3")
    e(f"s_add_u32 s{sM128}, s{sM128}, s{sXCD}")
    e(f"s_lshl_b32 s{sM64}, s{sM128}, 1")
    e(f"s_lshr_b32 s{sT0}, s{sJJ}, 3")
    e(f"s_add_u32 s{sM64}, s{sM64}, s{sT0}")
    e(f"s_and_b32 s{sNBLK}, s{sJJ}, 7")
    e(f"s_cmp_ge_u32 s{sWAVE}, 4")
    e("s_cbranch_scc0 L_compute")

    e.c("loader waves")
    e(f"s_sub_u32 s{sLW}, s{sWAVE}, 4")
    vX, vW1, vW3, vW2 = 10, 14, 17, 20
    e("v_lshrrev_b32 v2, 3, v0")
    e("v_and_b32 v3, 7, v0")
    e("v_lshrrev_b32 v4, 4, v0")
    e(f"s_lshl_b32 s{sT0}, s{sLW}, 15")
    for i in range(4):
        e(f"v_add_u32 v5, {(4*i)&7}, v4")
        e(f"v_xor_b32 v5, v5, v3")
        e(f"v_lshlrev_b32 v5, 4, v5")
        e(f"v_lshl_add_u32 v5, v2, 10, v5")
        e(f"v_add_u32 v5, {8192*i - 1024*i}, v5")
        e(f"v_add_u32 v{vX+i}, s{sT0}, v5")
    e(f"s_mul_i32 s{sT0}, s{sLW}, {16*2752}")
    e(f"s_lshl_b32 s{sT1}, s{sUST}, 5")
    e(f"s_add_u32 s{sT0}, s{sT0}, s{sT1}")
    e(f"s_lshl_b32 s{sT2}, s{sUCNT}, 1")
    e(f"s_mov_b32 s{sT3}, 2752")
    for i in range(3):
        e(f"v_add_u32 v5, {64*i}, v0")
        e(f"v_mul_u32_u24 v6, 43691, v5")
        e(f"v_lshrrev_b32 v6, 19, v6")
        e(f"v_mul_u32_u24 v7, 12, v6")
        e(f"v_sub_u32 v7, v5, v7")
        e(f"v_mul_lo_u32 v6, v6, s{sT3}")
        e(f"v_add_u32 v6, s{sT0}, v6")
        if i:
            e(f"v_subrev_u32 v6, {1024*i}, v6")
        e(f"v_cmp_le_u32 vcc, s{sT2}, v7")
        e(f"v_mov_b32 v8, 0x40000000")
        e(f"v_lshl_add_u32 v9, v7, 4, v6")
        e(f"v_cndmask_b32 v{vW1+i}, v9, v8, vcc")
        e(f"v_xor_b32 v7, 2, v7")
        e(f"v_lshl_add_u32 v9, v7, 4, v6")
        e(f"v_cndmask_b32 v{vW3+i}, v9, v8, vcc")
    e("v_and_b32 v5, 1, v4")
    e("v_lshlrev_b32 v5, 2, v5")
    e("v_xor_b32 v5, v5, v3")
    e("v_lshlrev_b32 v5, 4, v5")
    e("v_lshl_add_u32 v5, v2, 10, v5")
    e(f"s_lshl_b32 s{sT0}, s{sNBLK}, 7")
    e(f"v_add_u32 v{vW2}, s{sT0}, v5")
    for i in range(1, 4):
        e(f"v_add_u32 v{vW2+i}, {7168*i}, v{vW2}")
    e(f"s_lshl_b32 s{sXOFF}, s{sMBLK}, 17")
    e(f"s_mov_b32 s{sWOFF}, 0")
    e(f"s_lshl_b32 s{sT0}, s{sLW}, 12")
    e(f"s_mul_i32 s{sT1}, s{sLW}, 3072")
    e(f"s_add_u32 s{sT1}, s{sT1}, {W1B}")
    e(f"s_mov_b32 s{sSLOTB}, 0")
    e(f"s_mov_b32 s{sN}, 0")
    e("s_waitcnt lgkmcnt(0)")
    srd(SX, 4, 2097152)
    srd(SW1, 6, 1409024)
    srd(SW3, 8, 1409024)
    srd(SW2, 10, 1409024)
    srd(SDBG, 14, 256)
    stamp()
    e.label("L_ld1")
    e(f"s_cmp_lt_u32 s{sN}, 4")
    e("s_cbranch_scc1 L_ld1_issue")
    e(f"s_cmp_lg_u32 s{sN}, 4")
    e("s_cbranch_scc1 L_ld1_b")
    e("s_waitcnt vmcnt(30)")
    e("s_barrier")
    e.label("L_ld1_b")
    e("s_waitcnt vmcnt(20)")
    e("s_barrier")
    e.label("L_ld1_issue")
    e(f"s_add_u32 m0, s{sSLOTB}, s{sT0}")
    e("s_nop 0")
    for i in range(4):
        e(f"buffer_load_dwordx4 v{vX+i}, s[{SX}:{SX+3}], s{sXOFF} offen offset:{1024*i} lds")
    e(f"s_add_u32 m0, s{sSLOTB}, s{sT1}")
    e(f"s_add_u32 s{sXOFF}, s{sXOFF}, 128")
    for i in range(3):
        e(f"buffer_load_dwordx4 v{vW1+i}, s[{SW1}:{SW1+3}], s{sWOFF} offen offset:{1024*i} lds")
    e(f"s_add_u32 m0, m0, 12288")
    e(f"s_add_u32 s{sSLOTB}, s{sSLOTB}, {SLOT}")
    for i in range(3):
        e(f"buffer_load_dwordx4 v{vW3+i}, s[{SW3}:{SW3+3}], s{sWOFF} offen offset:{1024*i} lds")
    e(f"s_add_u32 s{sWOFF}, s{sWOFF}, {64*2752}")
    e(f"s_cmp_eq_u32 s{sSLOTB}, {4*SLOT}")
    e(f"s_cselect_b32 s{sSLOTB}, 0, s{sSLOTB}")
    e(f"s_add_u32 s{sN}, s{sN}, 1")
    e(f"s_cmp_lt_u32 s{sN}, 8")
    e("s_cbranch_scc1 L_ld1")
    e(f"s_mul_i32 s{sWOFF}, s{sLW}, {80*1024}")
    e(f"s_mul_i32 s{sSLOTB}, s{sLW}, 10240")
    e(f"s_mov_b32 s{sN}, 0")
    e.label("L_ld2")
    e("s_waitcnt vmcnt(20)")
    e("s_barrier")
    e(f"s_mov_b32 m0, s{sSLOTB}")
    e(f"s_add_u32 s{sT2}, s{sWOFF}, 32768")
    for i in range(4):
        e(f"buffer_load_dwordx4 v{vW2+i}, s[{SW2}:{SW2+3}], s{sWOFF} offen offset:{1024*i} lds")
    e(f"s_add_u32 m0, m0, 4096")
    e(f"s_add_u32 s{sT3}, s{sWOFF}, 65536")
    for i in range(4):
        e(f"buffer_load_dwordx4 v{vW2+i}, s[{SW2}:{SW2+3}], s{sT2} offen offset:{1024*i} lds")
    e(f"s_add_u32 m0, m0, 4096")
    e(f"s_add_u32 s{sSLOTB}, s{sSLOTB}, {SLOT}")
    for i in range(2):
        e(f"buffer_load_dwordx4 v{vW2+i}, s[{SW2}:{SW2+3}], s{sT3} offen offset:{1024*i} lds")
    e(f"s_cmp_eq_u32 s{sN}, 1")
    csel(sT2, 368*1024, 320*1024)
    e(f"s_add_u32 s{sWOFF}, s{sWOFF}, s{sT2}")
    e(f"s_add_u32 s{sN}, s{sN}, 1")
    e(f"s_cmp_lt_u32 s{sN}, 4")
    e("s_cbranch_scc1 L_ld2")
    e("s_barrier")
    stamp()
    e(f"s_cmp_lg_u32 s{sLW}, 0")
    e("s_cbranch_scc1 L_noflag")
    e(f"s_lshl_b32 s{sT0}, s{sMBLK}, 4")
    e(f"s_add_u32 s{sT0}, s{sT0}, s{sSLICE}")
    e("v_mov_b32 v5, 1")
    e("s_mov_b64 exec, 1")
    e(f"buffer_store_byte v5, off, s[{SDBG}:{SDBG+3}], s{sT0} sc1")
    e("s_mov_b64 exec, -1")
    e.label("L_noflag")
    e("s_waitcnt vmcnt(0)")
    e("s_barrier")
    e("s_barrier")
    e(f"s_and_b32 s{sT0}, s{sLW}, 1")
    e(f"s_mul_i32 s{sT1}, s{sT0}, 3072")
    e(f"s_mul_i32 s{sT0}, s{sT0}, {24*1024}")
    e(f"s_cmp_ge_u32 s{sLW}, 2")
    e(f"s_cselect_b32 s{sT2}, {2*SLOT}, 0")
    csel(sT3, 1328*1024, 640*1024)
    e(f"s_add_u32 m0, s{sT1}, s{sT2}")
    e(f"s_add_u32 s{sT0}, s{sT0}, s{sT3}")
    for i in range(3):
        e(f"buffer_load_dwordx4 v{vW2+i}, s[{SW2}:{SW2+3}], s{sT0} offen offset:{1024*i} lds")
    e(f"s_cmp_lg_u32 s{sLW}, 0")
    e("s_cbranch_scc1 L_nopoll")
    e(f"s_lshl_b32 s{sT0}, s{sM128}, 4")
    e(f"s_mov_b32 s{sCNT}, 0")
    e("s_mov_b64 exec, 1")
    e.label("L_poll")
    e(f"buffer_load_dwordx4 v[24:27], off, s[{SDBG}:{SDBG+3}], s{sT0} sc1")
    e(f"s_add_u32 s{sCNT}, s{sCNT}, 1")
    e("s_waitcnt vmcnt(0)")
    e("v_and_b32 v24, v24, v25")
    e("v_and_b32 v26, v26, v27")
    e("v_and_b32 v24, v24, v26")
    e("s_nop 0")
    e(f"v_readfirstlane_b32 s{sT1}, v24")
    e(f"s_cmp_ge_u32 s{sCNT}, 0x200000")
    e("s_cbranch_scc1 L_polldone")
    e(f"s_cmp_eq_u32 s{sT1}, 0x01010101")
    e("s_cbranch_scc0 L_poll")
    e.label("L_polldone")
    e("s_mov_b64 exec, -1")
    e.label("L_nopoll")
    e("s_waitcnt vmcnt(0)")
    stamp()
    e("s_barrier")
    if stamps:
        e(f"s_cmp_lg_u32 s{sLW}, 0")
        e("s_cbranch_scc1 L_end")
        srd(SH, 16, 0x10000000)
        e("s_waitcnt lgkmcnt(0)")
        e(f"s_lshl_b32 s{sT0}, s2, 8")
        e(f"s_add_u32 s{sT0}, s{sT0}, {0x800000 + 128}")
        e("s_mov_b64 exec, 1")
        for k in range(nst[0]):
            e(f"v_mov_b32 v5, s{STAMP0+2*k}")
            e(f"buffer_store_dword v5, off, s[{SH}:{SH+3}], s{sT0} offset:{4*k}")
        e(f"v_mov_b32 v5, s{sCNT}")
        e(f"buffer_store_dword v5, off, s[{SH}:{SH+3}], s{sT0} offset:{4*15}")
    e("s_endpgm")

    e.label("L_compute")
    nst[0] = 1 if stamps else 0
    ACC = 0
    FR = [96, 116]
    vXA = 240
    vA0, vA1 = 244, 245
    vL16 = 246
    vB0, vB1 = 247, 248
    vT = 250
    sWR, sWC = sT2, sT3
    e(f"s_and_b32 s{sLW}, s{sWAVE}, 1")
    e(f"s_lshr_b32 s{sCNT}, s{sWAVE}, 1")
    sWR, sWC = sLW, sCNT
    e(f"v_and_b32 v{vT}, 31, v0")
    e(f"v_lshrrev_b32 v{vT+1}, 5, v0")
    e(f"v_bfe_u32 v{vT+2}, v0, 1, 3")
    e(f"v_xor_b32 v{vT+2}, v{vT+2}, v{vT+1}")
    e(f"s_lshl_b32 s{sT0}, s{sWR}, 13")
    e(f"v_lshlrev_b32 v{vT}, 7, v{vT}")
    e(f"v_add_u32 v{vT}, s{sT0}, v{vT}")
    for t in range(4):
        e(f"v_xor_b32 v{vT+3}, {2*t}, v{vT+2}")
        e(f"v_lshl_add_u32 v{vXA+t}, v{vT+3}, 4, v{vT}")
    e(f"v_bfe_u32 v{vT}, v0, 2, 2")
    e(f"v_lshl_add_u32 v{vT}, v{vT+1}, 3, v{vT}")
    e(f"v_mul_u32_u24 v{vT}, 192, v{vT}")
    e(f"v_and_b32 v{vT+2}, 3, v0")
    e(f"v_lshl_add_u32 v{vT}, v{vT+2}, 3, v{vT}")
    e(f"s_mul_i32 s{sT0}, s{sWC}, 96")
    e(f"s_add_u32 s{sT0}, s{sT0}, {W1B}")
    e(f"v_add_u32 v{vT}, s{sT0}, v{vT}")
    e(f"v_bfe_u32 v{vT+2}, v0, 4, 1")
    e(f"s_cmp_eq_u32 s{sWC}, 0")
    csel(sT0, 12288+32, 12288-32)
    csel(sT1, 12288-32, 12288+32)
    e(f"v_mul_lo_u32 v{vT+3}, v{vT+2}, s{sT0}")
    e(f"v_add_u32 v{vA0}, v{vT}, v{vT+3}")
    e(f"v_mul_lo_u32 v{vT+3}, v{vT+2}, s{sT1}")
    e(f"v_add_u32 v{vA1}, v{vT}, v{vT+3}")
    e(f"v_lshlrev_b32 v{vL16}, 4, v0")
    e(f"v_bfe_u32 v{vT}, v0, 2, 2")
    e(f"v_lshl_add_u32 v{vT}, v{vT+1}, 2, v{vT}")
    e(f"v_lshlrev_b32 v{vT}, 7, v{vT}")
    e(f"v_bfe_u32 v{vT+2}, v0, 4, 1")
    e(f"v_lshl_add_u32 v{vT}, v{vT+2}, 5, v{vT}")
    e(f"v_and_b32 v{vT+2}, 3, v0")
    e(f"v_lshl_add_u32 v{vT}, v{vT+2}, 3, v{vT}")
    e(f"v_bfe_u32 v{vT+2}, v0, 3, 1")
    e(f"v_lshl_add_u32 v{vT}, v{vT+2}, 6, v{vT}")
    e(f"s_mul_i32 s{sT0}, s{sWC}, {2*SLOT}")
    e(f"v_add_u32 v{vB0}, s{sT0}, v{vT}")
    e(f"v_xor_b32 v{vB1}, 64, v{vB0}")
    e(f"v_mov_b32 v{vT+5}, v0")
    vLANE = vT+5
    for r in range(96):
        e(f"v_mov_b32 v{ACC+r}, 0")
    e(f"s_mov_b32 s{sN}, 0")
    e(f"s_mov_b32 s{sSLOTB}, 0")
    e("s_waitcnt lgkmcnt(0)")
    srd(SH, 16, 64*86*1024 if not stamps else 0x10000000)
    srd(SOUT, 12, 2097152)

    def reads(t, st):
        f = FR[st]
        L = []
        L.append((f"x0_{st}", f"ds_read_b128 {vr(f,4)}, v{vXA+t}"))
        def w(uj):
            a = vA1 if uj == 1 else vA0
            for rd in range(2):
                L.append((f"w{uj}{rd}_{st}", f"ds_read_b64_tr_b16 {vr(f+8+4*uj+2*rd,2)}, v{a} offset:{uj*32 + (16*t+4*rd)*192}"))
        w(0)
        L.append((f"x1_{st}", f"ds_read_b128 {vr(f+4,4)}, v{vXA+t} offset:4096"))
        w(1); w(2)
        return L
    def mfma(k, st):
        uj, mi = k // 2, k % 2
        f = FR[st]
        e.need(f"x{mi}_{st}", f"w{uj}0_{st}", f"w{uj}1_{st}")
        a = ACC + 16*(mi*3+uj)
        e(f"v_mfma_f32_32x32x16_bf16 {vr(a,16)}, {vr(f+8+4*uj,4)}, {vr(f+4*mi,4)}, {vr(a,16)}")

    e("s_barrier")
    stamp()
    if stamps: e("s_waitcnt lgkmcnt(0)")
    for tag, s in reads(0, 0):
        e.lds(tag, s)
    state0 = list(e.pend)
    e.label("L_p1")
    for t in range(3):
        st = t & 1
        R = reads(t+1, st ^ 1)
        for k in range(6):
            mfma(k, st)
            for tag, s in R[2*k:2*k+2]:
                e.lds(tag, s)
    e.drain()
    mfma(0, 1); mfma(1, 1)
    e(f"s_add_u32 s{sSLOTB}, s{sSLOTB}, 1")
    e(f"s_and_b32 s{sSLOTB}, s{sSLOTB}, 3")
    csel(sT0, SLOT, (-3*SLOT) & 0xffffffff)
    e("s_barrier")
    e(f"v_add_u32 v{vXA}, s{sT0}, v{vXA}")
    e(f"v_add_u32 v{vA0}, s{sT0}, v{vA0}")
    e(f"v_add_u32 v{vA1}, s{sT0}, v{vA1}")
    R = reads(0, 0)
    for tag, s in R[0:3]:
        e.lds(tag, s)
    mfma(2, 1)
    for tag, s in R[3:6]:
        e.lds(tag, s)
    mfma(3, 1)
    for tag, s in R[6:8]:
        e.lds(tag, s)
    for t in range(1, 4):
        e(f"v_add_u32 v{vXA+t}, s{sT0}, v{vXA+t}")
    mfma(4, 1)
    e(f"s_add_u32 s{sN}, s{sN}, 1")
    e(f"s_cmp_lt_u32 s{sN}, 8")
    mfma(5, 1)
    e("s_cbranch_scc1 L_p1")
    assert e.pend == state0, (e.pend, state0)
    e.drain()
    stamp()
    e(f"s_lshl_b32 s{sT0}, s{sMBLK}, 1")
    e(f"s_add_u32 s{sT0}, s{sT0}, s{sWR}")
    e(f"s_mul_i32 s{sT0}, s{sT0}, {2*86}")
    e(f"s_add_u32 s{sT0}, s{sT0}, s{sUST}")
    e(f"s_mul_i32 s{sT1}, s{sWC}, 3")
    e(f"s_add_u32 s{sT0}, s{sT0}, s{sT1}")
    e(f"s_lshl_b32 s{sT0}, s{sT0}, 10")
    e(f"s_add_u32 s{sXOFF}, s{sT0}, {86*1024}")
    e(f"s_sub_u32 s{sWOFF}, s{sUCNT}, s{sT1}")
    e(f"s_mov_b32 s{sT2}, 0xbfb8aa3b")
    e("s_nop 7")
    T = 96
    for uj in range(3):
        if uj == 1:
            e(f"s_cmp_lt_u32 s{sWOFF}, 2")
            e("s_cbranch_scc1 L_epi_done")
        for mi in range(2):
            a = ACC + 16*(mi*3+uj)
            tt = T + 8*mi
            for r in range(8):
                e(f"v_mul_f32 v{tt+r}, s{sT2}, v{a+r}")
            for r in range(8):
                e(f"v_exp_f32 v{tt+r}, v{tt+r}")
            for r in range(8):
                e(f"v_mul_f32 v{a+r}, v{a+r}, v{a+8+r}")
            for r in range(8):
                e(f"v_add_f32 v{tt+r}, 1.0, v{tt+r}")
            for r in range(8):
                e(f"v_rcp_f32 v{tt+r}, v{tt+r}")
            e("s_nop 0")
            for r in range(8):
                e(f"v_mul_f32 v{a+r}, v{a+r}, v{tt+r}")
            for r in range(4):
                e(f"v_cvt_pk_bf16_f32 v{a+8+r}, v{a+2*r}, v{a+2*r+1}")
            so = sT0 if mi == 0 else sXOFF
            e(f"buffer_store_dwordx4 {vr(a+8,4)}, v{vL16}, s[{SH}:{SH+3}], s{so} offen offset:{1024*uj} sc1")
    e.label("L_epi_done")
    stamp()
    e("s_waitcnt vmcnt(0)")
    e("s_barrier")
    stamp()
    HR = 0
    AC2 = 172
    WB = 204
    NB = 4
    for r in range(32):
        e(f"v_mov_b32 v{AC2+r}, 0")
    e(f"s_lshl_b32 s{sT0}, s{sM64}, 1")
    e(f"s_add_u32 s{sT0}, s{sT0}, s{sWR}")
    e(f"s_mul_i32 s{sT0}, s{sT0}, 86")
    e(f"s_mul_i32 s{sT1}, s{sWC}, 43")
    e(f"s_add_u32 s{sT0}, s{sT0}, s{sT1}")
    e(f"s_lshl_b32 s{sT0}, s{sT0}, 10")
    vB0h, vB1h = 240, 241
    e(f"v_add_u32 v{vB0h}, {SLOT}, v{vB0}")
    e(f"v_add_u32 v{vB1h}, {SLOT}, v{vB1}")
    if stamps: e("s_waitcnt lgkmcnt(0)")
    e("s_barrier")
    def w2reads(uu):
        up = uu if uu < 40 else uu - 40
        b = WB + 8*(uu % NB)
        L = []
        for dj in range(2):
            if up < 20:
                a, off = (vB0, vB1)[dj], up*2048
            else:
                a, off = (vB0h, vB1h)[dj], (up-20)*2048
            for rd in range(2):
                L.append((f"u{uu}_{dj}{rd}", f"ds_read_b64_tr_b16 {vr(b+4*dj+2*rd,2)}, v{a} offset:{off+1024*rd}"))
        return L
    for uu in range(3):
        for tag, s in w2reads(uu):
            e.lds(tag, s)
    e.drain()
    e("s_barrier")
    e("s_barrier")
    stamp()
    for uu in range(43):
        e(f"buffer_load_dwordx4 {vr(HR+4*uu,4)}, v{vL16}, s[{SH}:{SH+3}], s{sT0} offen offset:{1024*(uu%4)} sc1")
        if uu % 4 == 3:
            e(f"s_add_u32 s{sT0}, s{sT0}, 4096")
    if stamps: e("s_waitcnt lgkmcnt(0)")
    for uu in range(43):
        R = w2reads(uu+3) if uu + 3 < 43 else []
        b = WB + 8*(uu % NB)
        e(f"s_waitcnt vmcnt({42-uu})")
        for dj in range(2):
            e.need(f"u{uu}_{dj}0", f"u{uu}_{dj}1")
            a = AC2 + 16*dj
            e(f"v_mfma_f32_32x32x16_bf16 {vr(a,16)}, {vr(b+4*dj,4)}, {vr(HR+4*uu,4)}, {vr(a,16)}")
            for tag, s in R[2*dj:2*dj+2]:
                e.lds(tag, s)
    stamp()
    e("s_barrier")
    e(f"s_lshl_b32 s{sT0}, s{sWAVE}, 12")
    e(f"v_add_u32 v0, s{sT0}, v{vL16}")
    e(f"s_xor_b32 s{sT0}, s{sT0}, {2*4096}")
    e(f"v_add_u32 v1, s{sT0}, v{vL16}")
    e("s_nop 7")
    e(f"s_cmp_eq_u32 s{sWC}, 0")
    e("s_cbranch_scc1 L_kh0")
    for j in range(4):
        e(f"ds_write_b128 v0, {vr(AC2+4*j,4)} offset:{1024*j}")
    for r in range(16):
        e(f"v_mov_b32 v{16+r}, v{AC2+16+r}")
    e("s_branch L_khj")
    e.label("L_kh0")
    for j in range(4):
        e(f"ds_write_b128 v0, {vr(AC2+16+4*j,4)} offset:{1024*j}")
    for r in range(16):
        e(f"v_mov_b32 v{16+r}, v{AC2+r}")
    e.label("L_khj")
    e("s_waitcnt lgkmcnt(0)")
    e("s_barrier")
    for j in range(4):
        e(f"ds_read_b128 {vr(32+4*j,4)}, v1 offset:{1024*j}")
    e(f"v_and_b32 v2, 31, v{vLANE}")
    e(f"v_lshrrev_b32 v3, 5, v{vLANE}")
    e(f"v_lshlrev_b32 v2, 10, v2")
    e(f"v_lshl_add_u32 v2, v3, 4, v2")
    e(f"s_lshl_b32 s{sT0}, s{sM64}, 1")
    e(f"s_add_u32 s{sT0}, s{sT0}, s{sWR}")
    e(f"s_lshl_b32 s{sT0}, s{sT0}, 15")
    e(f"s_lshl_b32 s{sT1}, s{sNBLK}, 7")
    e(f"s_add_u32 s{sT0}, s{sT0}, s{sT1}")
    e(f"s_lshl_b32 s{sT1}, s{sWC}, 6")
    e(f"s_add_u32 s{sT0}, s{sT0}, s{sT1}")
    e("s_waitcnt lgkmcnt(0)")
    for r in range(16):
        e(f"v_add_f32 v{16+r}, v{16+r}, v{32+r}")
    for r in range(8):
        e(f"v_cvt_pk_bf16_f32 v{48+r}, v{16+2*r}, v{16+2*r+1}")
    e("s_nop 1")
    e("v_permlane32_swap_b32 v48, v50")
    e("v_permlane32_swap_b32 v49, v51")
    e("v_permlane32_swap_b32 v52, v54")
    e("v_permlane32_swap_b32 v53, v55")
    e("s_nop 1")
    e(f"buffer_store_dwordx4 v[48:51], v2, s[{SOUT}:{SOUT+3}], s{sT0} offen")
    e(f"buffer_store_dwordx4 v[52:55], v2, s[{SOUT}:{SOUT+3}], s{sT0} offen offset:32")
    if stamps:
        stamp()
        e("s_waitcnt vmcnt(0)")
        stamp()
        e(f"s_cmp_lg_u32 s{sWAVE}, 0")
        e("s_cbranch_scc1 L_end")
        e("s_waitcnt lgkmcnt(0)")
        e(f"s_lshl_b32 s{sT0}, s2, 8")
        e(f"s_add_u32 s{sT0}, s{sT0}, {0x800000}")
        e("s_mov_b64 exec, 1")
        for k in range(nst[0]):
            e(f"v_mov_b32 v5, s{STAMP0+2*k}")
            e(f"buffer_store_dword v5, off, s[{SH}:{SH+3}], s{sT0} offset:{4*k}")
        e(f"s_getreg_b32 s{sT1}, hwreg(HW_REG_XCC_ID)")
        e(f"v_mov_b32 v5, s{sT1}")
        e(f"buffer_store_dword v5, off, s[{SH}:{SH+3}], s{sT0} offset:{4*15}")
    e.label("L_end")
    e("s_endpgm")

    head = f"""; Fused SwiGLU MLP: out = (silu(x@w1) * (x@w3)) @ w2   (bf16, M=2048 D=512 F=1376)
; @launch grid=(256,1,1) block=(512,1,1) lds=163840
.amdgcn_target "amdgcn-amd-amdhsa--gfx950"
.text
.globl {NAME}_kernel
.p2align 8
.type {NAME}_kernel,@function
{NAME}_kernel:
"""
    tail = f""".section .rodata,"a"
.p2align 6
.amdhsa_kernel {NAME}_kernel
  .amdhsa_next_free_vgpr 256
  .amdhsa_next_free_sgpr 102
  .amdhsa_accum_offset 256
  .amdhsa_group_segment_fixed_size 0
  .amdhsa_kernarg_size 56
  .amdhsa_user_sgpr_count 2
  .amdhsa_user_sgpr_kernarg_segment_ptr 1
  .amdhsa_system_sgpr_workgroup_id_x 1
.end_amdhsa_kernel
"""
    return head + e.text() + tail

if __name__ == "__main__":
    ap = argparse.ArgumentParser()
    ap.add_argument("-o", default="/dev/stdout")
    ap.add_argument("--stamps", action="store_true")
    a = ap.parse_args()
    open(a.o, "w").write(gen(stamps=a.stamps))
```

```python
import sys, argparse

NAME = "standalone__glu_gated_swiglu__prompt"

class E:
    def __init__(self):
        self.lines = []
        self.pend = []
    def __call__(self, s):
        self.lines.append("    " + s)
    def label(self, l):
        self.lines.append(l + ":")
    def c(self, s):
        self.lines.append("    ; " + s)
    def lds(self, tag, s):
        self.pend.append(tag)
        assert len(self.pend) <= 15, "lgkm overflow"
        self(s)
    def need(self, *tags):
        idx = -1
        for t in tags:
            if t in self.pend:
                idx = max(idx, self.pend.index(t))
        if idx >= 0:
            n = len(self.pend) - 1 - idx
            self(f"s_waitcnt lgkmcnt({n})")
            self.pend = self.pend[idx+1:]
    def drain(self):
        self("s_waitcnt lgkmcnt(0)")
        self.pend = []
    def text(self):
        return "\n".join(self.lines) + "\n"

def vr(a, n):
    return f"v[{a}:{a+n-1}]"

SLOT = 40960
XB, W1B, W3B = 0, 16384, 16384 + 12288

def gen(stamps=False, noload=False, nomfma=False, nords=False, probe=0):
    e = E()
    SX, SW1, SW3, SW2, SOUT, SDBG, SH = 20, 24, 28, 32, 36, 40, 44
    sWAVE, sXCD, sJJ, sHALF, sSLICE, sMBLK, sUST, sUCNT, sM128, sM64, sNBLK = range(50, 61)
    sT0, sT1, sT2, sT3, sN, sSLOTB, sXOFF, sWOFF, sLW, sCNT = range(61, 71)
    STAMP0 = 72
    nst = [0]
    def stamp():
        if stamps:
            e(f"s_memrealtime s[{STAMP0+2*nst[0]}:{STAMP0+2*nst[0]+1}]")
            nst[0] += 1
    def lstamp():
        if stamps:
            e("s_memrealtime s[94:95]")
            e("s_memtime s[92:93]")
            e("s_mov_b32 m0, s96")
            e("s_waitcnt lgkmcnt(0)")
            e("s_sub_u32 s92, s92, s98")
            e("v_writelane_b32 v30, s94, m0")
            e("s_add_u32 m0, m0, 32")
            e("s_add_u32 s96, s96, 1")
            e("v_writelane_b32 v30, s92, m0")
    def csel(dst, a, b):
        e(f"s_mov_b32 s{dst}, {b}")
        e(f"s_cmov_b32 s{dst}, {a}")
    def srd(base, ptr, nbytes):
        e(f"s_mov_b32 s{base}, s{ptr}")
        e(f"s_and_b32 s{base+1}, s{ptr+1}, 0xffff")
        e(f"s_mov_b32 s{base+2}, {nbytes}")
        e(f"s_mov_b32 s{base+3}, 0x20000")

    e("s_cmp_ge_u32 s2, 256")
    e("s_cbranch_scc1 L_end")
    e("s_load_dwordx8 s[4:11], s[0:1], 0")
    e("s_load_dwordx4 s[12:15], s[0:1], 32")
    e("s_load_dwordx2 s[16:17], s[0:1], 48")
    stamp()
    if stamps: e("s_memtime s[98:99]")
    e("v_lshrrev_b32 v1, 6, v0")
    e("v_and_b32 v0, 63, v0")
    e(f"s_and_b32 s{sXCD}, s2, 7")
    e(f"v_readfirstlane_b32 s{sWAVE}, v1")
    e(f"s_lshr_b32 s{sJJ}, s2, 3")
    e(f"s_lshr_b32 s{sHALF}, s{sJJ}, 4")
    e(f"s_and_b32 s{sJJ}, s{sJJ}, 15")
    e(f"s_and_b32 s{sT0}, s{sXCD}, 3")
    e(f"s_and_b32 s{sT1}, s{sJJ}, 3")
    e(f"s_lshl_b32 s{sSLICE}, s{sT0}, 2")
    e(f"s_add_u32 s{sSLICE}, s{sSLICE}, s{sT1}")
    e(f"s_mul_i32 s{sUST}, s{sT0}, 22")
    e(f"s_mul_i32 s{sT2}, s{sT1}, 6")
    e(f"s_add_u32 s{sUST}, s{sUST}, s{sT2}")
    e(f"s_cmp_eq_u32 s{sSLICE}, 15")
    e(f"s_cselect_b32 s{sT2}, 2, 0")
    e(f"s_sub_u32 s{sUST}, s{sUST}, s{sT2}")
    e(f"s_cmp_eq_u32 s{sT1}, 3")
    e(f"s_cselect_b32 s{sUCNT}, 4, 6")
    e(f"s_cmp_eq_u32 s{sSLICE}, 14")
    e(f"s_cselect_b32 s{sUCNT}, 4, s{sUCNT}")
    e(f"s_lshl_b32 s{sMBLK}, s{sHALF}, 3")
    e(f"s_lshr_b32 s{sT0}, s{sXCD}, 2")
    e(f"s_lshl_b32 s{sT0}, s{sT0}, 2")
    e(f"s_add_u32 s{sMBLK}, s{sMBLK}, s{sT0}")
    e(f"s_lshr_b32 s{sT0}, s{sJJ}, 2")
    e(f"s_add_u32 s{sMBLK}, s{sMBLK}, s{sT0}")
    e(f"s_lshl_b32 s{sM128}, s{sHALF}, 3")
    e(f"s_add_u32 s{sM128}, s{sM128}, s{sXCD}")
    e(f"s_lshl_b32 s{sM64}, s{sM128}, 1")
    e(f"s_lshr_b32 s{sT0}, s{sJJ}, 3")
    e(f"s_add_u32 s{sM64}, s{sM64}, s{sT0}")
    e(f"s_and_b32 s{sNBLK}, s{sJJ}, 7")
    e(f"s_cmp_ge_u32 s{sWAVE}, 4")
    e("s_cbranch_scc0 L_compute")

    e.c("loader waves")
    e(f"s_sub_u32 s{sLW}, s{sWAVE}, 4")
    vX, vW1, vW3, vW2 = 10, 14, 17, 20
    e("v_lshrrev_b32 v2, 3, v0")
    e("v_and_b32 v3, 7, v0")
    e("v_lshrrev_b32 v4, 4, v0")
    e(f"s_lshl_b32 s{sT0}, s{sLW}, 15")
    for i in range(4):
        e(f"v_add_u32 v5, {(4*i)&7}, v4")
        e(f"v_xor_b32 v5, v5, v3")
        e(f"v_lshlrev_b32 v5, 4, v5")
        e(f"v_lshl_add_u32 v5, v2, 10, v5")
        e(f"v_add_u32 v5, {8192*i - 1024*i}, v5")
        e(f"v_add_u32 v{vX+i}, s{sT0}, v5")
    e(f"s_mul_i32 s{sT0}, s{sLW}, {16*2752}")
    e(f"s_lshl_b32 s{sT1}, s{sUST}, 5")
    e(f"s_add_u32 s{sT0}, s{sT0}, s{sT1}")
    e(f"s_lshl_b32 s{sT2}, s{sUCNT}, 1")
    e(f"s_mov_b32 s{sT3}, 2752")
    for i in range(3):
        e(f"v_add_u32 v5, {64*i}, v0")
        e(f"v_mul_u32_u24 v6, 43691, v5")
        e(f"v_lshrrev_b32 v6, 19, v6")
        e(f"v_mul_u32_u24 v7, 12, v6")
        e(f"v_sub_u32 v7, v5, v7")
        e(f"v_mul_lo_u32 v6, v6, s{sT3}")
        e(f"v_add_u32 v6, s{sT0}, v6")
        if i:
            e(f"v_subrev_u32 v6, {1024*i}, v6")
        e(f"v_cmp_le_u32 vcc, s{sT2}, v7")
        e(f"v_mov_b32 v8, 0x40000000")
        e(f"v_lshl_add_u32 v9, v7, 4, v6")
        e(f"v_cndmask_b32 v{vW1+i}, v9, v8, vcc")
        e(f"v_xor_b32 v7, 2, v7")
        e(f"v_lshl_add_u32 v9, v7, 4, v6")
        e(f"v_cndmask_b32 v{vW3+i}, v9, v8, vcc")
    e("v_and_b32 v5, 1, v4")
    e("v_lshlrev_b32 v5, 2, v5")
    e("v_xor_b32 v5, v5, v3")
    e("v_lshlrev_b32 v5, 4, v5")
    e("v_lshl_add_u32 v5, v2, 10, v5")
    e(f"s_lshl_b32 s{sT0}, s{sNBLK}, 7")
    e(f"v_add_u32 v{vW2}, s{sT0}, v5")
    for i in range(1, 4):
        e(f"v_add_u32 v{vW2+i}, {7168*i}, v{vW2}")
    e(f"s_lshl_b32 s{sXOFF}, s{sMBLK}, 17")
    e(f"s_mov_b32 s{sWOFF}, 0")
    e(f"s_lshl_b32 s{sT0}, s{sLW}, 12")
    e(f"s_mul_i32 s{sT1}, s{sLW}, 3072")
    e(f"s_add_u32 s{sT1}, s{sT1}, {W1B}")
    e(f"s_mov_b32 s{sSLOTB}, 0")
    e(f"s_mov_b32 s{sN}, 0")
    e("s_waitcnt lgkmcnt(0)")
    srd(SX, 4, 2097152)
    srd(SW1, 6, 1409024)
    srd(SW3, 8, 1409024)
    srd(SW2, 10, 1409024)
    srd(SDBG, 14, 256)
    stamp()
    if probe:
        e(f"s_mul_i32 s90, s2, {40*128}")
        e("s_mov_b32 s91, 0")
        e.label("L_probe")
        e(f"buffer_load_dword v40, off, s[{probe}:{probe+3}], s90")
        e("s_add_u32 s90, s90, 128")
        e("s_add_u32 s91, s91, 1")
        e("s_waitcnt vmcnt(0)")
        e("s_cmp_lt_u32 s91, 40")
        e("s_cbranch_scc1 L_probe")
    if stamps:
        e("s_mov_b32 s96, 0")
        e("v_mov_b32 v30, 0")
    e.label("L_ld1")
    e(f"s_cmp_lt_u32 s{sN}, 4")
    e("s_cbranch_scc1 L_ld1_issue")
    e(f"s_cmp_lg_u32 s{sN}, 4")
    e("s_cbranch_scc1 L_ld1_b")
    e("s_waitcnt vmcnt(30)")
    lstamp()
    e("s_barrier")
    e.label("L_ld1_b")
    e("s_waitcnt vmcnt(20)")
    lstamp()
    e("s_barrier")
    lstamp()
    if noload: e("s_branch L_ld1_skip")
    e.label("L_ld1_issue")
    e(f"s_add_u32 m0, s{sSLOTB}, s{sT0}")
    e("s_nop 0")
    for i in range(4):
        e(f"buffer_load_dwordx4 v{vX+i}, s[{SX}:{SX+3}], s{sXOFF} offen offset:{1024*i} lds")
    e(f"s_add_u32 m0, s{sSLOTB}, s{sT1}")
    e(f"s_add_u32 s{sXOFF}, s{sXOFF}, 128")
    for i in range(3):
        e(f"buffer_load_dwordx4 v{vW1+i}, s[{SW1}:{SW1+3}], s{sWOFF} offen offset:{1024*i} lds")
    e(f"s_add_u32 m0, m0, 12288")
    e(f"s_add_u32 s{sSLOTB}, s{sSLOTB}, {SLOT}")
    for i in range(3):
        e(f"buffer_load_dwordx4 v{vW3+i}, s[{SW3}:{SW3+3}], s{sWOFF} offen offset:{1024*i} lds")
    e.label("L_ld1_skip")
    e(f"s_add_u32 s{sWOFF}, s{sWOFF}, {64*2752}")
    e(f"s_cmp_eq_u32 s{sSLOTB}, {4*SLOT}")
    e(f"s_cselect_b32 s{sSLOTB}, 0, s{sSLOTB}")
    e(f"s_add_u32 s{sN}, s{sN}, 1")
    e(f"s_cmp_lt_u32 s{sN}, 8")
    e("s_cbranch_scc1 L_ld1")
    e(f"s_mul_i32 s{sWOFF}, s{sLW}, {80*1024}")
    e(f"s_mul_i32 s{sSLOTB}, s{sLW}, 10240")
    e(f"s_mov_b32 s{sN}, 0")
    e.label("L_ld2")
    e("s_waitcnt vmcnt(20)")
    lstamp()
    e("s_barrier")
    lstamp()
    if noload: e("s_branch L_ld2_skip")
    e(f"s_mov_b32 m0, s{sSLOTB}")
    e(f"s_add_u32 s{sT2}, s{sWOFF}, 32768")
    for i in range(4):
        e(f"buffer_load_dwordx4 v{vW2+i}, s[{SW2}:{SW2+3}], s{sWOFF} offen offset:{1024*i} lds")
    e(f"s_add_u32 m0, m0, 4096")
    e(f"s_add_u32 s{sT3}, s{sWOFF}, 65536")
    for i in range(4):
        e(f"buffer_load_dwordx4 v{vW2+i}, s[{SW2}:{SW2+3}], s{sT2} offen offset:{1024*i} lds")
    e(f"s_add_u32 m0, m0, 4096")
    e(f"s_add_u32 s{sSLOTB}, s{sSLOTB}, {SLOT}")
    for i in range(2):
        e(f"buffer_load_dwordx4 v{vW2+i}, s[{SW2}:{SW2+3}], s{sT3} offen offset:{1024*i} lds")
    e.label("L_ld2_skip")
    e(f"s_cmp_eq_u32 s{sN}, 1")
    csel(sT2, 368*1024, 320*1024)
    e(f"s_add_u32 s{sWOFF}, s{sWOFF}, s{sT2}")
    e(f"s_add_u32 s{sN}, s{sN}, 1")
    e(f"s_cmp_lt_u32 s{sN}, 4")
    e("s_cbranch_scc1 L_ld2")
    e("s_barrier")
    stamp()
    e(f"s_cmp_lg_u32 s{sLW}, 0")
    e("s_cbranch_scc1 L_noflag")
    e(f"s_lshl_b32 s{sT0}, s{sMBLK}, 4")
    e(f"s_add_u32 s{sT0}, s{sT0}, s{sSLICE}")
    e("v_mov_b32 v5, 1")
    e("s_mov_b64 exec, 1")
    e(f"buffer_store_byte v5, off, s[{SDBG}:{SDBG+3}], s{sT0} sc1")
    e("s_mov_b64 exec, -1")
    e.label("L_noflag")
    e("s_waitcnt vmcnt(0)")
    e("s_barrier")
    e("s_barrier")
    e(f"s_and_b32 s{sT0}, s{sLW}, 1")
    e(f"s_mul_i32 s{sT1}, s{sT0}, 3072")
    e(f"s_mul_i32 s{sT0}, s{sT0}, {24*1024}")
    e(f"s_cmp_ge_u32 s{sLW}, 2")
    e(f"s_cselect_b32 s{sT2}, {2*SLOT}, 0")
    csel(sT3, 1328*1024, 640*1024)
    e(f"s_add_u32 m0, s{sT1}, s{sT2}")
    e(f"s_add_u32 s{sT0}, s{sT0}, s{sT3}")
    for i in range(3):
        e(f"buffer_load_dwordx4 v{vW2+i}, s[{SW2}:{SW2+3}], s{sT0} offen offset:{1024*i} lds")
    e(f"s_cmp_lg_u32 s{sLW}, 0")
    e("s_cbranch_scc1 L_nopoll")
    e(f"s_lshl_b32 s{sT0}, s{sM128}, 4")
    e(f"s_mov_b32 s{sCNT}, 0")
    e("s_mov_b64 exec, 1")
    e.label("L_poll")
    e(f"buffer_load_dwordx4 v[24:27], off, s[{SDBG}:{SDBG+3}], s{sT0} sc1")
    e(f"s_add_u32 s{sCNT}, s{sCNT}, 1")
    e("s_waitcnt vmcnt(0)")
    e("v_and_b32 v24, v24, v25")
    e("v_and_b32 v26, v26, v27")
    e("v_and_b32 v24, v24, v26")
    e("s_nop 0")
    e(f"v_readfirstlane_b32 s{sT1}, v24")
    e(f"s_cmp_ge_u32 s{sCNT}, 0x200000")
    e("s_cbranch_scc1 L_polldone")
    e(f"s_cmp_eq_u32 s{sT1}, 0x01010101")
    e("s_cbranch_scc0 L_poll")
    e.label("L_polldone")
    e("s_mov_b64 exec, -1")
    e.label("L_nopoll")
    e("s_waitcnt vmcnt(0)")
    stamp()
    e("s_barrier")
    if stamps:
        e(f"s_cmp_lg_u32 s{sLW}, 0")
        e("s_cbranch_scc1 L_end")
        srd(SH, 16, 0x10000000)
        e("s_waitcnt lgkmcnt(0)")
        e(f"s_lshl_b32 s{sT0}, s2, 8")
        e(f"s_add_u32 s{sT0}, s{sT0}, {0x800000 + 128}")
        e("s_mov_b64 exec, 1")
        for k in range(nst[0]):
            e(f"v_mov_b32 v5, s{STAMP0+2*k}")
            e(f"buffer_store_dword v5, off, s[{SH}:{SH+3}], s{sT0} offset:{4*k}")
        e(f"v_mov_b32 v5, s{sCNT}")
        e(f"buffer_store_dword v5, off, s[{SH}:{SH+3}], s{sT0} offset:{4*15}")
        e("s_mov_b64 exec, -1")
        e(f"s_lshl_b32 s{sT0}, s2, 8")
        e(f"s_add_u32 s{sT0}, s{sT0}, {0x900000}")
        e("v_lshlrev_b32 v5, 2, v0")
        e(f"buffer_store_dword v30, v5, s[{SH}:{SH+3}], s{sT0} offen")
    e("s_endpgm")

    e.label("L_compute")
    nst[0] = 1 if stamps else 0
    ACC = 0
    FR = [96, 116]
    vXA = 240
    vA0, vA1 = 244, 245
    vL16 = 246
    vB0, vB1 = 247, 248
    vT = 250
    sWR, sWC = sT2, sT3
    e(f"s_and_b32 s{sLW}, s{sWAVE}, 1")
    e(f"s_lshr_b32 s{sCNT}, s{sWAVE}, 1")
    sWR, sWC = sLW, sCNT
    e(f"v_and_b32 v{vT}, 31, v0")
    e(f"v_lshrrev_b32 v{vT+1}, 5, v0")
    e(f"v_bfe_u32 v{vT+2}, v0, 1, 3")
    e(f"v_xor_b32 v{vT+2}, v{vT+2}, v{vT+1}")
    e(f"s_lshl_b32 s{sT0}, s{sWR}, 13")
    e(f"v_lshlrev_b32 v{vT}, 7, v{vT}")
    e(f"v_add_u32 v{vT}, s{sT0}, v{vT}")
    for t in range(4):
        e(f"v_xor_b32 v{vT+3}, {2*t}, v{vT+2}")
        e(f"v_lshl_add_u32 v{vXA+t}, v{vT+3}, 4, v{vT}")
    e(f"v_bfe_u32 v{vT}, v0, 2, 2")
    e(f"v_lshl_add_u32 v{vT}, v{vT+1}, 3, v{vT}")
    e(f"v_mul_u32_u24 v{vT}, 192, v{vT}")
    e(f"v_and_b32 v{vT+2}, 3, v0")
    e(f"v_lshl_add_u32 v{vT}, v{vT+2}, 3, v{vT}")
    e(f"s_mul_i32 s{sT0}, s{sWC}, 96")
    e(f"s_add_u32 s{sT0}, s{sT0}, {W1B}")
    e(f"v_add_u32 v{vT}, s{sT0}, v{vT}")
    e(f"v_bfe_u32 v{vT+2}, v0, 4, 1")
    e(f"s_cmp_eq_u32 s{sWC}, 0")
    csel(sT0, 12288+32, 12288-32)
    csel(sT1, 12288-32, 12288+32)
    e(f"v_mul_lo_u32 v{vT+3}, v{vT+2}, s{sT0}")
    e(f"v_add_u32 v{vA0}, v{vT}, v{vT+3}")
    e(f"v_mul_lo_u32 v{vT+3}, v{vT+2}, s{sT1}")
    e(f"v_add_u32 v{vA1}, v{vT}, v{vT+3}")
    e(f"v_lshlrev_b32 v{vL16}, 4, v0")
    e(f"v_bfe_u32 v{vT}, v0, 2, 2")
    e(f"v_lshl_add_u32 v{vT}, v{vT+1}, 2, v{vT}")
    e(f"v_lshlrev_b32 v{vT}, 7, v{vT}")
    e(f"v_bfe_u32 v{vT+2}, v0, 4, 1")
    e(f"v_lshl_add_u32 v{vT}, v{vT+2}, 5, v{vT}")
    e(f"v_and_b32 v{vT+2}, 3, v0")
    e(f"v_lshl_add_u32 v{vT}, v{vT+2}, 3, v{vT}")
    e(f"v_bfe_u32 v{vT+2}, v0, 3, 1")
    e(f"v_lshl_add_u32 v{vT}, v{vT+2}, 6, v{vT}")
    e(f"s_mul_i32 s{sT0}, s{sWC}, {2*SLOT}")
    e(f"v_add_u32 v{vB0}, s{sT0}, v{vT}")
    e(f"v_xor_b32 v{vB1}, 64, v{vB0}")
    e(f"v_mov_b32 v{vT+5}, v0")
    vLANE = vT+5
    for r in range(96):
        e(f"v_mov_b32 v{ACC+r}, 0")
    e(f"s_mov_b32 s{sN}, 0")
    e(f"s_mov_b32 s{sSLOTB}, 0")
    e("s_waitcnt lgkmcnt(0)")
    srd(SH, 16, 64*86*1024 if not stamps else 0x10000000)
    srd(SOUT, 12, 2097152)

    def reads(t, st):
        f = FR[st]
        L = []
        L.append((f"x0_{st}", f"ds_read_b128 {vr(f,4)}, v{vXA+t}"))
        def w(uj):
            a = vA1 if uj == 1 else vA0
            for rd in range(2):
                L.append((f"w{uj}{rd}_{st}", f"ds_read_b64_tr_b16 {vr(f+8+4*uj+2*rd,2)}, v{a} offset:{uj*32 + (16*t+4*rd)*192}"))
        w(0)
        L.append((f"x1_{st}", f"ds_read_b128 {vr(f+4,4)}, v{vXA+t} offset:4096"))
        w(1); w(2)
        if nords: return []
        return L
    def mfma(k, st):
        uj, mi = k // 2, k % 2
        f = FR[st]
        e.need(f"x{mi}_{st}", f"w{uj}0_{st}", f"w{uj}1_{st}")
        a = ACC + 16*(mi*3+uj)
        if not nomfma:
            e(f"v_mfma_f32_32x32x16_bf16 {vr(a,16)}, {vr(f+8+4*uj,4)}, {vr(f+4*mi,4)}, {vr(a,16)}")

    e("s_barrier")
    stamp()
    if stamps: e("s_waitcnt lgkmcnt(0)")
    for tag, s in reads(0, 0):
        e.lds(tag, s)
    state0 = list(e.pend)
    e.label("L_p1")
    for t in range(3):
        st = t & 1
        R = reads(t+1, st ^ 1)
        for k in range(6):
            mfma(k, st)
            for tag, s in R[2*k:2*k+2]:
                e.lds(tag, s)
    e.drain()
    mfma(0, 1); mfma(1, 1)
    e(f"s_add_u32 s{sSLOTB}, s{sSLOTB}, 1")
    e(f"s_and_b32 s{sSLOTB}, s{sSLOTB}, 3")
    csel(sT0, SLOT, (-3*SLOT) & 0xffffffff)
    e("s_barrier")
    e(f"v_add_u32 v{vXA}, s{sT0}, v{vXA}")
    e(f"v_add_u32 v{vA0}, s{sT0}, v{vA0}")
    e(f"v_add_u32 v{vA1}, s{sT0}, v{vA1}")
    R = reads(0, 0)
    for tag, s in R[0:3]:
        e.lds(tag, s)
    mfma(2, 1)
    for tag, s in R[3:6]:
        e.lds(tag, s)
    mfma(3, 1)
    for tag, s in R[6:8]:
        e.lds(tag, s)
    for t in range(1, 4):
        e(f"v_add_u32 v{vXA+t}, s{sT0}, v{vXA+t}")
    mfma(4, 1)
    e(f"s_add_u32 s{sN}, s{sN}, 1")
    e(f"s_cmp_lt_u32 s{sN}, 8")
    mfma(5, 1)
    e("s_cbranch_scc1 L_p1")
    assert e.pend == state0, (e.pend, state0)
    e.drain()
    stamp()
    e(f"s_lshl_b32 s{sT0}, s{sMBLK}, 1")
    e(f"s_add_u32 s{sT0}, s{sT0}, s{sWR}")
    e(f"s_mul_i32 s{sT0}, s{sT0}, {2*86}")
    e(f"s_add_u32 s{sT0}, s{sT0}, s{sUST}")
    e(f"s_mul_i32 s{sT1}, s{sWC}, 3")
    e(f"s_add_u32 s{sT0}, s{sT0}, s{sT1}")
    e(f"s_lshl_b32 s{sT0}, s{sT0}, 10")
    e(f"s_add_u32 s{sXOFF}, s{sT0}, {86*1024}")
    e(f"s_sub_u32 s{sWOFF}, s{sUCNT}, s{sT1}")
    e(f"s_mov_b32 s{sT2}, 0xbfb8aa3b")
    e("s_nop 7")
    T = 96
    for uj in range(3):
        if uj == 1:
            e(f"s_cmp_lt_u32 s{sWOFF}, 2")
            e("s_cbranch_scc1 L_epi_done")
        for mi in range(2):
            a = ACC + 16*(mi*3+uj)
            tt = T + 8*mi
            for r in range(8):
                e(f"v_mul_f32 v{tt+r}, s{sT2}, v{a+r}")
            for r in range(8):
                e(f"v_exp_f32 v{tt+r}, v{tt+r}")
            for r in range(8):
                e(f"v_mul_f32 v{a+r}, v{a+r}, v{a+8+r}")
            for r in range(8):
                e(f"v_add_f32 v{tt+r}, 1.0, v{tt+r}")
            for r in range(8):
                e(f"v_rcp_f32 v{tt+r}, v{tt+r}")
            e("s_nop 0")
            for r in range(8):
                e(f"v_mul_f32 v{a+r}, v{a+r}, v{tt+r}")
            for r in range(4):
                e(f"v_cvt_pk_bf16_f32 v{a+8+r}, v{a+2*r}, v{a+2*r+1}")
            so = sT0 if mi == 0 else sXOFF
            e(f"buffer_store_dwordx4 {vr(a+8,4)}, v{vL16}, s[{SH}:{SH+3}], s{so} offen offset:{1024*uj} sc1")
    e.label("L_epi_done")
    stamp()
    e("s_waitcnt vmcnt(0)")
    e("s_barrier")
    stamp()
    HR = 0
    AC2 = 172
    WB = 204
    NB = 4
    for r in range(32):
        e(f"v_mov_b32 v{AC2+r}, 0")
    e(f"s_lshl_b32 s{sT0}, s{sM64}, 1")
    e(f"s_add_u32 s{sT0}, s{sT0}, s{sWR}")
    e(f"s_mul_i32 s{sT0}, s{sT0}, 86")
    e(f"s_mul_i32 s{sT1}, s{sWC}, 43")
    e(f"s_add_u32 s{sT0}, s{sT0}, s{sT1}")
    e(f"s_lshl_b32 s{sT0}, s{sT0}, 10")
    vB0h, vB1h = 240, 241
    e(f"v_add_u32 v{vB0h}, {SLOT}, v{vB0}")
    e(f"v_add_u32 v{vB1h}, {SLOT}, v{vB1}")
    if stamps: e("s_waitcnt lgkmcnt(0)")
    e("s_barrier")
    def w2reads(uu):
        up = uu if uu < 40 else uu - 40
        b = WB + 8*(uu % NB)
        L = []
        for dj in range(2):
            if up < 20:
                a, off = (vB0, vB1)[dj], up*2048
            else:
                a, off = (vB0h, vB1h)[dj], (up-20)*2048
            for rd in range(2):
                L.append((f"u{uu}_{dj}{rd}", f"ds_read_b64_tr_b16 {vr(b+4*dj+2*rd,2)}, v{a} offset:{off+1024*rd}"))
        return L
    for uu in range(3):
        for tag, s in w2reads(uu):
            e.lds(tag, s)
    e.drain()
    e("s_barrier")
    e("s_barrier")
    stamp()
    for uu in range(43):
        e(f"buffer_load_dwordx4 {vr(HR+4*uu,4)}, v{vL16}, s[{SH}:{SH+3}], s{sT0} offen offset:{1024*(uu%4)} sc1")
        if uu % 4 == 3:
            e(f"s_add_u32 s{sT0}, s{sT0}, 4096")
    if stamps: e("s_waitcnt lgkmcnt(0)")
    for uu in range(43):
        R = w2reads(uu+3) if uu + 3 < 43 else []
        b = WB + 8*(uu % NB)
        e(f"s_waitcnt vmcnt({42-uu})")
        for dj in range(2):
            e.need(f"u{uu}_{dj}0", f"u{uu}_{dj}1")
            a = AC2 + 16*dj
            e(f"v_mfma_f32_32x32x16_bf16 {vr(a,16)}, {vr(b+4*dj,4)}, {vr(HR+4*uu,4)}, {vr(a,16)}")
            for tag, s in R[2*dj:2*dj+2]:
                e.lds(tag, s)
    stamp()
    e("s_barrier")
    e(f"s_lshl_b32 s{sT0}, s{sWAVE}, 12")
    e(f"v_add_u32 v0, s{sT0}, v{vL16}")
    e(f"s_xor_b32 s{sT0}, s{sT0}, {2*4096}")
    e(f"v_add_u32 v1, s{sT0}, v{vL16}")
    e("s_nop 7")
    e(f"s_cmp_eq_u32 s{sWC}, 0")
    e("s_cbranch_scc1 L_kh0")
    for j in range(4):
        e(f"ds_write_b128 v0, {vr(AC2+4*j,4)} offset:{1024*j}")
    for r in range(16):
        e(f"v_mov_b32 v{16+r}, v{AC2+16+r}")
    e("s_branch L_khj")
    e.label("L_kh0")
    for j in range(4):
        e(f"ds_write_b128 v0, {vr(AC2+16+4*j,4)} offset:{1024*j}")
    for r in range(16):
        e(f"v_mov_b32 v{16+r}, v{AC2+r}")
    e.label("L_khj")
    e("s_waitcnt lgkmcnt(0)")
    e("s_barrier")
    for j in range(4):
        e(f"ds_read_b128 {vr(32+4*j,4)}, v1 offset:{1024*j}")
    e(f"v_and_b32 v2, 31, v{vLANE}")
    e(f"v_lshrrev_b32 v3, 5, v{vLANE}")
    e(f"v_lshlrev_b32 v2, 10, v2")
    e(f"v_lshl_add_u32 v2, v3, 4, v2")
    e(f"s_lshl_b32 s{sT0}, s{sM64}, 1")
    e(f"s_add_u32 s{sT0}, s{sT0}, s{sWR}")
    e(f"s_lshl_b32 s{sT0}, s{sT0}, 15")
    e(f"s_lshl_b32 s{sT1}, s{sNBLK}, 7")
    e(f"s_add_u32 s{sT0}, s{sT0}, s{sT1}")
    e(f"s_lshl_b32 s{sT1}, s{sWC}, 6")
    e(f"s_add_u32 s{sT0}, s{sT0}, s{sT1}")
    e("s_waitcnt lgkmcnt(0)")
    for r in range(16):
        e(f"v_add_f32 v{16+r}, v{16+r}, v{32+r}")
    for r in range(8):
        e(f"v_cvt_pk_bf16_f32 v{48+r}, v{16+2*r}, v{16+2*r+1}")
    e("s_nop 1")
    e("v_permlane32_swap_b32 v48, v50")
    e("v_permlane32_swap_b32 v49, v51")
    e("v_permlane32_swap_b32 v52, v54")
    e("v_permlane32_swap_b32 v53, v55")
    e("s_nop 1")
    e(f"buffer_store_dwordx4 v[48:51], v2, s[{SOUT}:{SOUT+3}], s{sT0} offen")
    e(f"buffer_store_dwordx4 v[52:55], v2, s[{SOUT}:{SOUT+3}], s{sT0} offen offset:32")
    if stamps:
        stamp()
        e("s_waitcnt vmcnt(0)")
        stamp()
        e("s_memtime s[100:101]")
        e(f"s_cmp_lg_u32 s{sWAVE}, 0")
        e("s_cbranch_scc1 L_end")
        e("s_waitcnt lgkmcnt(0)")
        e(f"s_sub_u32 s100, s100, s98")
        e(f"s_lshl_b32 s{sT0}, s2, 8")
        e(f"s_add_u32 s{sT0}, s{sT0}, {0x800000}")
        e("s_mov_b64 exec, 1")
        for k in range(nst[0]):
            e(f"v_mov_b32 v5, s{STAMP0+2*k}")
            e(f"buffer_store_dword v5, off, s[{SH}:{SH+3}], s{sT0} offset:{4*k}")
        e(f"v_mov_b32 v5, s100")
        e(f"buffer_store_dword v5, off, s[{SH}:{SH+3}], s{sT0} offset:{4*16}")
        e(f"s_getreg_b32 s{sT1}, hwreg(HW_REG_XCC_ID)")
        e(f"v_mov_b32 v5, s{sT1}")
        e(f"buffer_store_dword v5, off, s[{SH}:{SH+3}], s{sT0} offset:{4*15}")
    e.label("L_end")
    e("s_endpgm")

    head = f"""; Fused SwiGLU MLP: out = (silu(x@w1) * (x@w3)) @ w2   (bf16, M=2048 D=512 F=1376)
; @launch grid=(256,1,1) block=(512,1,1) lds=163840
.amdgcn_target "amdgcn-amd-amdhsa--gfx950"
.text
.globl {NAME}_kernel
.p2align 8
.type {NAME}_kernel,@function
{NAME}_kernel:
"""
    tail = f""".section .rodata,"a"
.p2align 6
.amdhsa_kernel {NAME}_kernel
  .amdhsa_next_free_vgpr 256
  .amdhsa_next_free_sgpr 102
  .amdhsa_accum_offset 256
  .amdhsa_group_segment_fixed_size 0
  .amdhsa_kernarg_size 56
  .amdhsa_user_sgpr_count 2
  .amdhsa_user_sgpr_kernarg_segment_ptr 1
  .amdhsa_system_sgpr_workgroup_id_x 1
.end_amdhsa_kernel
"""
    return head + e.text() + tail

if __name__ == "__main__":
    ap = argparse.ArgumentParser()
    ap.add_argument("-o", default="/dev/stdout")
    ap.add_argument("--stamps", action="store_true")
    ap.add_argument("--noload", action="store_true")
    ap.add_argument("--nomfma", action="store_true")
    ap.add_argument("--nords", action="store_true")
    ap.add_argument("--probe", type=int, default=0)
    a = ap.parse_args()
    open(a.o, "w").write(gen(stamps=a.stamps, noload=a.noload, nomfma=a.nomfma, nords=a.nords, probe=a.probe))
```

```python
import sys, argparse

NAME = "standalone__glu_gated_swiglu__prompt"

class E:
    def __init__(self):
        self.lines = []
        self.pend = []
    def __call__(self, s):
        self.lines.append("    " + s)
    def label(self, l):
        self.lines.append(l + ":")
    def c(self, s):
        self.lines.append("    ; " + s)
    def lds(self, tag, s):
        self.pend.append(tag)
        assert len(self.pend) <= 15, "lgkm overflow"
        self(s)
    def need(self, *tags):
        idx = -1
        for t in tags:
            if t in self.pend:
                idx = max(idx, self.pend.index(t))
        if idx >= 0:
            n = len(self.pend) - 1 - idx
            self(f"s_waitcnt lgkmcnt({n})")
            self.pend = self.pend[idx+1:]
    def drain(self):
        self("s_waitcnt lgkmcnt(0)")
        self.pend = []
    def text(self):
        return "\n".join(self.lines) + "\n"

def vr(a, n):
    return f"v[{a}:{a+n-1}]"

SLOT = 40960
W1B = 16384
HBYTES = 64*86*1024
FLAGB = 0x600000

def gen(o):
    e = E()
    stamps = o.stamps
    SX, SW1, SW3, SW2, SOUT, SDBG, SH = 20, 24, 28, 32, 36, 40, 44
    sWAVE, sXCD, sJJ, sHALF, sSLICE, sMBLK, sUST, sUCNT, sM128, sM64, sNBLK = range(50, 61)
    sT0, sT1, sT2, sT3, sN, sR4, sLW, sCNT = range(61, 69)
    sXO, sW1O, sW3O, sXL, sW1L, sW3L, sMX, sM1, sM3 = range(69, 78)
    WSB = 0x10000000 if stamps else (FLAGB + 32*o.fs1)
    STV = 252
    nst = [0]
    def stamp(drain_ok=True):
        if stamps:
            n = nst[0]
            e("s_memrealtime s[94:95]")
            e("s_memtime s[92:93]")
            e("s_waitcnt lgkmcnt(0)")
            e.pend = []
            e("s_sub_u32 s92, s92, s98")
            e(f"v_writelane_b32 v{STV}, s94, {n}")
            e(f"v_writelane_b32 v{STV}, s92, {32+n}")
            nst[0] += 1
    def lstamp():
        if stamps:
            e("s_memrealtime s[94:95]")
            e("s_memtime s[92:93]")
            e("s_mov_b32 m0, s96")
            e("s_waitcnt lgkmcnt(0)")
            e("s_sub_u32 s92, s92, s98")
            e(f"v_writelane_b32 v{STV}, s94, m0")
            e("s_add_u32 m0, m0, 32")
            e("s_add_u32 s96, s96, 1")
            e(f"v_writelane_b32 v{STV}, s92, m0")
    def stamp_out(base):
        e("s_mov_b64 exec, -1")
        e(f"s_lshl_b32 s{sT0}, s2, 8")
        e(f"s_add_u32 s{sT0}, s{sT0}, {base}")
        e("v_mbcnt_lo_u32_b32 v5, -1, 0")
        e("v_mbcnt_hi_u32_b32 v5, -1, v5")
        e("v_lshlrev_b32 v5, 2, v5")
        e(f"buffer_store_dword v{STV}, v5, s[{SH}:{SH+3}], s{sT0} offen")
    def csel(dst, a, b):
        e(f"s_mov_b32 s{dst}, {b}")
        e(f"s_cmov_b32 s{dst}, {a}")
    def srd(base, ptr, nbytes):
        e(f"s_mov_b32 s{base}, s{ptr}")
        e(f"s_and_b32 s{base+1}, s{ptr+1}, 0xffff")
        e(f"s_mov_b32 s{base+2}, {nbytes}")
        e(f"s_mov_b32 s{base+3}, 0x20000")

    e("s_cmp_ge_u32 s2, 256")
    e("s_cbranch_scc1 L_end")
    e("s_load_dwordx8 s[4:11], s[0:1], 0")
    e("s_load_dwordx4 s[12:15], s[0:1], 32")
    e("s_load_dwordx2 s[16:17], s[0:1], 48")
    if stamps:
        e("s_memtime s[98:99]")
        e("s_memrealtime s[90:91]")
        e(f"v_mov_b32 v{STV}, 0")
    e("v_lshrrev_b32 v1, 6, v0")
    e("v_and_b32 v0, 63, v0")
    e(f"s_and_b32 s{sXCD}, s2, 7")
    e(f"v_readfirstlane_b32 s{sWAVE}, v1")
    e(f"s_lshr_b32 s{sJJ}, s2, 3")
    e(f"s_lshr_b32 s{sHALF}, s{sJJ}, 4")
    e(f"s_and_b32 s{sJJ}, s{sJJ}, 15")
    e(f"s_and_b32 s{sT0}, s{sXCD}, 3")
    e(f"s_and_b32 s{sT1}, s{sJJ}, 3")
    e(f"s_lshl_b32 s{sSLICE}, s{sT0}, 2")
    e(f"s_add_u32 s{sSLICE}, s{sSLICE}, s{sT1}")
    e(f"s_mul_i32 s{sUST}, s{sT0}, 22")
    e(f"s_mul_i32 s{sT2}, s{sT1}, 6")
    e(f"s_add_u32 s{sUST}, s{sUST}, s{sT2}")
    e(f"s_cmp_eq_u32 s{sSLICE}, 15")
    e(f"s_cselect_b32 s{sT2}, 2, 0")
    e(f"s_sub_u32 s{sUST}, s{sUST}, s{sT2}")
    e(f"s_cmp_eq_u32 s{sT1}, 3")
    e(f"s_cselect_b32 s{sUCNT}, 4, 6")
    e(f"s_cmp_eq_u32 s{sSLICE}, 14")
    e(f"s_cselect_b32 s{sUCNT}, 4, s{sUCNT}")
    e(f"s_lshl_b32 s{sMBLK}, s{sHALF}, 3")
    e(f"s_and_b32 s{sT0}, s{sXCD}, 4")
    e(f"s_add_u32 s{sMBLK}, s{sMBLK}, s{sT0}")
    e(f"s_lshr_b32 s{sT0}, s{sJJ}, 2")
    e(f"s_add_u32 s{sMBLK}, s{sMBLK}, s{sT0}")
    e(f"s_lshl_b32 s{sM128}, s{sHALF}, 3")
    e(f"s_add_u32 s{sM128}, s{sM128}, s{sXCD}")
    e(f"s_lshl_b32 s{sM64}, s{sM128}, 1")
    e(f"s_lshr_b32 s{sT2}, s{sJJ}, 3")
    e(f"s_add_u32 s{sM64}, s{sM64}, s{sT2}")
    e(f"s_and_b32 s{sNBLK}, s{sJJ}, 7")
    e(f"s_lshl_b32 s{sR4}, s{sHALF}, 1")
    e(f"s_add_u32 s{sR4}, s{sR4}, s{sT2}")
    if o.norot2:
        e(f"s_mov_b32 s{sR4}, 0")
    e(f"s_cmp_ge_u32 s{sWAVE}, 4")
    e("s_cbranch_scc0 L_compute")

    e.c("loader waves")
    e(f"s_sub_u32 s{sLW}, s{sWAVE}, 4")
    e(f"s_lshl_b32 s{sT2}, s{sHALF}, 2")
    e(f"s_add_u32 s{sT2}, s{sT2}, s{sT0}")
    e(f"s_lshl_b32 s{sT3}, s{sT1}, 1")
    e(f"s_add_u32 s{sT2}, s{sT2}, s{sT3}")
    e(f"s_and_b32 s{sM3}, s{sT2}, {o.rotmask}")
    e(f"s_movk_i32 s{sMX}, 0x1fb")
    e(f"s_movk_i32 s{sM1}, 0x1fd")
    vX, vW1, vW3, vW2 = 10, 14, 17, 20
    e("v_lshrrev_b32 v2, 3, v0")
    e("v_and_b32 v3, 7, v0")
    e("v_lshrrev_b32 v4, 4, v0")
    e(f"v_xor_b32 v5, v4, v3")
    e(f"v_lshlrev_b32 v5, 4, v5")
    e(f"v_lshl_add_u32 v{vX}, v2, 10, v5")
    e(f"v_xor_b32 v5, 64, v{vX}")
    e(f"v_add_u32 v{vX+1}, {7168}, v5")
    e(f"v_add_u32 v{vX+2}, {2*7168}, v{vX}")
    e(f"v_add_u32 v{vX+3}, {3*7168}, v5")
    e(f"s_lshl_b32 s{sT2}, s{sUCNT}, 1")
    e(f"s_movk_i32 s{sT3}, 2752")
    e(f"v_mov_b32 v8, 0x40000000")
    for i in range(3):
        if i:
            e(f"v_add_u32 v5, {64*i}, v0")
        src = "v5" if i else "v0"
        e(f"v_mul_u32_u24 v6, 43691, {src}")
        e(f"v_lshrrev_b32 v6, 19, v6")
        e(f"v_mul_u32_u24 v7, 12, v6")
        e(f"v_sub_u32 v7, {src}, v7")
        e(f"v_mul_u32_u24 v6, s{sT3}, v6")
        e(f"v_cmp_le_u32 vcc, s{sT2}, v7")
        e(f"v_lshl_add_u32 v9, v7, 4, v6")
        if i:
            e(f"v_subrev_u32 v9, {1024*i}, v9")
        else:
            e("s_nop 0")
        e(f"v_cndmask_b32 v{vW1+i}, v9, v8, vcc")
        e(f"v_xor_b32 v{vW3+i}, 32, v{vW1+i}")
    sXE, sWE = sW3O, sW3L
    e(f"s_lshl_b32 s{sXO}, s{sMBLK}, 17")
    e(f"s_lshl_b32 s{sT0}, s{sLW}, 15")
    e(f"s_add_u32 s{sXO}, s{sXO}, s{sT0}")
    e(f"s_add_u32 s{sXE}, s{sXO}, 1024")
    e(f"s_lshl_b32 s{sT0}, s{sM3}, 7")
    e(f"s_add_u32 s{sXO}, s{sXO}, s{sT0}")
    e(f"s_mul_i32 s{sW1O}, s{sLW}, {16*2752}")
    e(f"s_lshl_b32 s{sT1}, s{sUST}, 5")
    e(f"s_add_u32 s{sW1O}, s{sW1O}, s{sT1}")
    e(f"s_add_u32 s{sWE}, s{sW1O}, {512*2752}")
    e(f"s_mul_i32 s{sT0}, s{sM3}, {64*2752}")
    e(f"s_add_u32 s{sW1O}, s{sW1O}, s{sT0}")
    e(f"s_lshl_b32 s{sXL}, s{sLW}, 12")
    e(f"s_mul_i32 s{sW1L}, s{sLW}, 3072")
    e(f"s_add_u32 s{sW1L}, s{sW1L}, {W1B}")
    e(f"s_mov_b32 s{sN}, 0")
    e(f"s_mov_b32 s{SX+2}, 2097152")
    e(f"s_mov_b32 s{SX+3}, 0x20000")
    e(f"s_mov_b32 s{SW1+2}, 1409024")
    e(f"s_mov_b32 s{SW1+3}, 0x20000")
    e(f"s_mov_b32 s{SW3+2}, 1409024")
    e(f"s_mov_b32 s{SW3+3}, 0x20000")
    if stamps:
        e("s_mov_b32 s96, 1")
    e("s_waitcnt lgkmcnt(0)")
    e(f"s_mov_b32 s{SX}, s4")
    e(f"s_and_b32 s{SX+1}, s5, 0xffff")
    e(f"s_mov_b32 s{SW1}, s6")
    e(f"s_and_b32 s{SW1+1}, s7, 0xffff")
    e(f"s_mov_b32 s{SW3}, s8")
    e(f"s_and_b32 s{SW3+1}, s9, 0xffff")
    if stamps:
        e(f"v_writelane_b32 v{STV}, s90, 0")
    def adv(sl, so, se, step, span):
        e(f"s_add_u32 s{so}, s{so}, {step}")
        e(f"s_cmp_eq_u32 s{so}, s{se}")
        e(f"s_cselect_b32 s{sT0}, {span}, 0")
        e(f"s_sub_u32 s{so}, s{so}, s{sT0}")
        e(f"s_cmp_ge_u32 s{sl}, {4*SLOT}")
        e(f"s_cselect_b32 s{sT0}, {4*SLOT}, 0")
        e(f"s_sub_u32 s{sl}, s{sl}, s{sT0}")
    e.label("L_ld1")
    e(f"s_cmp_lg_u32 s{sN}, 2")
    e("s_cbranch_scc1 L_ld1_a")
    e("s_waitcnt vmcnt(4)")
    e("s_branch L_ld1_bar")
    e.label("L_ld1_a")
    e(f"s_cmp_lt_u32 s{sN}, 4")
    e("s_cbranch_scc1 L_ld1_issue")
    e("s_waitcnt vmcnt(10)")
    e.label("L_ld1_bar")
    lstamp()
    e("s_barrier")
    lstamp()
    e.label("L_ld1_issue")
    e(f"s_bitcmp1_b32 s{sMX}, s{sN}")
    e(f"s_cbranch_scc0 L_skip_x")
    e(f"s_mov_b32 m0, s{sXL}")
    e(f"s_add_u32 s{sXL}, s{sXL}, {SLOT}")
    for i in range(4):
        e(f"buffer_load_dwordx4 v{vX+i}, s[{SX}:{SX+3}], s{sXO} offen offset:{1024*i} {o.xfl} lds")
    adv(sXL, sXO, sXE, 128, 1024)
    e.label("L_skip_x")
    e(f"s_bitcmp1_b32 s{sM1}, s{sN}")
    e(f"s_cbranch_scc0 L_skip_w")
    e(f"s_mov_b32 m0, s{sW1L}")
    e(f"s_add_u32 s{sW1L}, s{sW1L}, {SLOT}")
    for i in range(3):
        e(f"buffer_load_dwordx4 v{vW1+i}, s[{SW1}:{SW1+3}], s{sW1O} offen offset:{1024*i} {o.wfl} lds")
    e(f"s_add_u32 m0, m0, 12288")
    e("s_nop 0")
    for i in range(3):
        e(f"buffer_load_dwordx4 v{vW3+i}, s[{SW3}:{SW3+3}], s{sW1O} offen offset:{1024*i} {o.wfl} lds")
    adv(sW1L, sW1O, sWE, 64*2752, 512*2752)
    e.label("L_skip_w")
    e(f"s_add_u32 s{sN}, s{sN}, 1")
    e(f"s_cmp_lt_u32 s{sN}, 9")
    e("s_cbranch_scc1 L_ld1")
    e("v_and_b32 v5, 1, v4")
    e("v_lshlrev_b32 v5, 2, v5")
    e("v_xor_b32 v5, v5, v3")
    e("v_lshlrev_b32 v5, 4, v5")
    e("v_lshl_add_u32 v5, v2, 10, v5")
    e(f"s_lshl_b32 s{sT0}, s{sNBLK}, 7")
    e(f"v_add_u32 v{vW2}, s{sT0}, v5")
    for i in range(1, 4):
        e(f"v_add_u32 v{vW2+i}, {7168*i}, v{vW2}")
    srd(SW2, 10, 1409024)
    srd(SDBG, 14, 256)
    srd(SH, 16, WSB)
    e(f"buffer_load_dwordx2 v[28:29], off, s[{SDBG}:{SDBG+3}], 0 sc1")
    sWO, sSL, sCH = sXO, sXL, sW1O
    e(f"s_mul_i32 s{sSL}, s{sLW}, 10240")
    e(f"s_mov_b32 s{sCH}, s{sR4}")
    e(f"s_mov_b32 s{sN}, 0")
    thr = [0]
    def chunk_setup():
        e(f"s_mul_i32 s{sWO}, s{sCH}, 320")
        e(f"s_cmp_ge_u32 s{sCH}, 2")
        e(f"s_cselect_b32 s{sT0}, 48, 0")
        e(f"s_add_u32 s{sWO}, s{sWO}, s{sT0}")
        e(f"s_mul_i32 s{sT0}, s{sLW}, 80")
        e(f"s_add_u32 s{sWO}, s{sWO}, s{sT0}")
        e(f"s_lshl_b32 s{sWO}, s{sWO}, 10")
        e(f"s_add_u32 s{sT2}, s{sWO}, 32768")
        e(f"s_add_u32 s{sT3}, s{sWO}, 65536")
        e(f"s_add_u32 s{sCH}, s{sCH}, 1")
        e(f"s_and_b32 s{sCH}, s{sCH}, 3")
    def w2grp(so, n, ldsoff):
        e(f"s_add_u32 m0, s{sSL}, {ldsoff}")
        e("s_nop 0")
        for i in range(n):
            if thr[0]: e(f"s_waitcnt vmcnt({thr[0]})")
            e(f"buffer_load_dwordx4 v{vW2+i}, s[{SW2}:{SW2+3}], s{so} offen offset:{1024*i} {o.w2fl} lds")
    chunk_setup()
    e("s_waitcnt vmcnt(11)")
    lstamp()
    e("s_barrier")
    lstamp()
    w2grp(sWO, 4, 0)
    w2grp(sT2, 4, 4096)
    w2grp(sT3, 2, 8192)
    e(f"s_lshr_b32 s{sT0}, s{sLW}, 1")
    e(f"s_and_b32 s{sT2}, s{sLW}, 1")
    e(f"s_mul_i32 s{sT0}, s{sT0}, 688")
    e(f"s_mul_i32 s{sT2}, s{sT2}, 24")
    e(f"s_add_u32 s{sT0}, s{sT0}, s{sT2}")
    e(f"s_add_u32 s{sT0}, s{sT0}, 640")
    e(f"s_lshl_b32 s{sT0}, s{sT0}, 10")
    e("s_waitcnt vmcnt(10)")
    lstamp()
    e("s_barrier")
    lstamp()
    for i in range(2):
        e(f"buffer_load_dwordx4 {vr(32+4*i,4)}, v{vW2+i}, s[{SW2}:{SW2+3}], s{sT0} offen offset:{1024*i} {o.w2fl}")
    lstamp()
    e("s_barrier")
    lstamp()
    thr[0] = o.thr
    e(f"buffer_load_dwordx4 {vr(40,4)}, v{vW2+2}, s[{SW2}:{SW2+3}], s{sT0} offen offset:2048 {o.w2fl}")
    e(f"s_mov_b32 s{sCNT}, 0")
    e.label("L_nonce2")
    e(f"v_readfirstlane_b32 s{sT0}, v28")
    e(f"s_add_u32 s{sCNT}, s{sCNT}, 1")
    e(f"s_cmp_lg_u32 s{sT0}, 0")
    e("s_cbranch_scc1 L_nonce2_ok")
    e(f"s_cmp_ge_u32 s{sCNT}, 0x200000")
    e("s_cbranch_scc1 L_nonce2_ok")
    e(f"buffer_load_dwordx2 v[28:29], off, s[{SDBG}:{SDBG+3}], 0 sc1")
    e("s_waitcnt vmcnt(0)")
    e("s_branch L_nonce2")
    e.label("L_nonce2_ok")
    if o.early1:
        e(f"s_add_u32 s{sSL}, s{sSL}, {SLOT}")
        chunk_setup()
        e(f"s_waitcnt vmcnt(0)")
        thr[0] = 0
        w2grp(sWO, 4, 0)
        w2grp(sT2, 4, 4096)
        w2grp(sT3, 2, 8192)
        thr[0] = o.thr
        e(f"s_add_u32 s{sN}, s{sN}, 1")
    lstamp()
    e("s_barrier")
    e.label("L_ld2")
    e(f"s_add_u32 s{sSL}, s{sSL}, {SLOT}")
    chunk_setup()
    w2grp(sWO, 4, 0)
    w2grp(sT2, 4, 4096)
    w2grp(sT3, 2, 8192)
    e(f"s_add_u32 s{sN}, s{sN}, 1")
    e(f"s_cmp_lt_u32 s{sN}, 3")
    e("s_cbranch_scc1 L_ld2")
    lstamp()
    if o.p1only: e("s_branch L_ldfin")
    e(f"s_and_b32 s{sT1}, s{sLW}, 2")
    e(f"s_lshr_b32 s{sT2}, s{sNBLK}, 2")
    e(f"s_add_u32 s{sT1}, s{sT1}, s{sT2}")
    e(f"s_sub_u32 s{sT1}, s{sT1}, s{sR4}")
    e(f"s_and_b32 s{sT1}, s{sT1}, 3")
    e(f"s_mul_i32 s{sT1}, s{sT1}, {SLOT}")
    e(f"s_and_b32 s{sT2}, s{sNBLK}, 3")
    e(f"s_mul_i32 s{sT2}, s{sT2}, 10240")
    e(f"s_add_u32 s{sT1}, s{sT1}, s{sT2}")
    e(f"s_and_b32 s{sT2}, s{sLW}, 1")
    e(f"s_mul_i32 s{sT3}, s{sT2}, 3072")
    e(f"s_add_u32 s{sT1}, s{sT1}, s{sT3}")
    e(f"v_lshlrev_b32 v6, 4, v0")
    e(f"v_add_u32 v6, s{sT1}, v6")
    e(f"s_cmp_lg_u32 s{sLW}, 0")
    e("s_cbranch_scc1 L_nopoll")
    e(f"s_mul_i32 s{sT0}, s{sM64}, {o.fs1}")
    e(f"s_add_u32 s{sT0}, s{sT0}, {FLAGB}")
    e(f"v_mul_u32_u24 v5, {o.fs2}, v0")
    e(f"s_mov_b32 s{sCNT}, 0")
    e("s_mov_b64 exec, 0xffffffff")
    e.label("L_poll")
    e(f"buffer_load_dwordx2 v[24:25], v5, s[{SH}:{SH+3}], s{sT0} offen sc1")
    e(f"s_add_u32 s{sCNT}, s{sCNT}, 1")
    e("s_waitcnt vmcnt(0)")
    e("v_cmp_ne_u64 vcc, v[24:25], v[28:29]")
    e(f"s_cmp_ge_u32 s{sCNT}, 0x200000")
    e("s_cbranch_scc1 L_polldone")
    e("s_cbranch_vccnz L_poll")
    e.label("L_polldone")
    e("s_mov_b64 exec, -1")
    if stamps: e(f"v_writelane_b32 v{STV}, s{sCNT}, 31")
    e.label("L_nopoll")
    e("s_waitcnt vmcnt(0)")
    lstamp()
    e("s_barrier")
    e("s_barrier")
    for i in range(3):
        e(f"ds_write_b128 v6, {vr(32+4*i,4)} offset:{1024*i}")
    e("s_waitcnt lgkmcnt(0)")
    lstamp()
    e("s_barrier")
    e.label("L_ldfin")
    if stamps:
        e(f"s_cmp_lg_u32 s{sLW}, 0")
        e("s_cbranch_scc1 L_end")
        stamp_out(0x900000)
    e("s_endpgm")

    e.label("L_compute")
    ACC = 0
    FR = [96, 116]
    vXA = 240
    vA0, vA1 = 244, 245
    vL16 = 246
    vB = 247
    vT = 248
    vLANE = 253
    sWR, sWC = sLW, sCNT
    e(f"s_and_b32 s{sWR}, s{sWAVE}, 1")
    e(f"s_lshr_b32 s{sWC}, s{sWAVE}, 1")
    e(f"v_and_b32 v{vT}, 31, v0")
    e(f"v_lshrrev_b32 v{vT+1}, 5, v0")
    e(f"v_bfe_u32 v{vT+2}, v0, 1, 3")
    e(f"v_xor_b32 v{vT+2}, v{vT+2}, v{vT+1}")
    e(f"s_lshl_b32 s{sT0}, s{sWR}, 13")
    e(f"v_lshlrev_b32 v{vT}, 7, v{vT}")
    e(f"v_add_u32 v{vT}, s{sT0}, v{vT}")
    for t in range(4):
        e(f"v_xor_b32 v{vT+3}, {2*t}, v{vT+2}")
        e(f"v_lshl_add_u32 v{vXA+t}, v{vT+3}, 4, v{vT}")
    e(f"v_bfe_u32 v{vT}, v0, 2, 2")
    e(f"v_lshl_add_u32 v{vT}, v{vT+1}, 3, v{vT}")
    e(f"v_mul_u32_u24 v{vT}, 192, v{vT}")
    e(f"v_and_b32 v{vT+2}, 3, v0")
    e(f"v_lshl_add_u32 v{vT}, v{vT+2}, 3, v{vT}")
    e(f"s_mul_i32 s{sT0}, s{sWC}, 96")
    e(f"s_add_u32 s{sT0}, s{sT0}, {W1B}")
    e(f"v_add_u32 v{vT}, s{sT0}, v{vT}")
    e(f"v_bfe_u32 v{vT+2}, v0, 4, 1")
    e(f"s_cmp_eq_u32 s{sWC}, 0")
    csel(sT0, 12288+32, 12288-32)
    csel(sT1, 12288-32, 12288+32)
    e(f"v_mul_lo_u32 v{vT+3}, v{vT+2}, s{sT0}")
    e(f"v_add_u32 v{vA0}, v{vT}, v{vT+3}")
    e(f"v_mul_lo_u32 v{vT+3}, v{vT+2}, s{sT1}")
    e(f"v_add_u32 v{vA1}, v{vT}, v{vT+3}")
    e(f"v_lshlrev_b32 v{vL16}, 4, v0")
    e(f"v_bfe_u32 v{vT}, v0, 2, 2")
    e(f"v_lshl_add_u32 v{vT}, v{vT+1}, 2, v{vT}")
    e(f"v_lshlrev_b32 v{vT}, 7, v{vT}")
    e(f"v_bfe_u32 v{vT+2}, v0, 4, 1")
    e(f"v_lshl_add_u32 v{vT}, v{vT+2}, 5, v{vT}")
    e(f"v_and_b32 v{vT+2}, 3, v0")
    e(f"v_lshl_add_u32 v{vT}, v{vT+2}, 3, v{vT}")
    e(f"v_bfe_u32 v{vT+2}, v0, 3, 1")
    e(f"v_lshl_add_u32 v{vB}, v{vT+2}, 6, v{vT}")
    e(f"v_mov_b32 v{vLANE}, v0")
    e("s_waitcnt lgkmcnt(0)")
    srd(SH, 16, WSB)
    srd(SOUT, 12, 2097152)
    srd(SDBG, 14, 256)
    e(f"s_or_b32 s{sT0}, s2, s{sWAVE}")
    e(f"s_cbranch_scc1 L_nopub")
    e("s_memrealtime s[80:81]")
    e("s_waitcnt lgkmcnt(0)")
    e("s_or_b32 s80, s80, 1")
    e("v_mov_b32 v2, s80")
    e("v_mov_b32 v3, s81")
    e("s_mov_b64 exec, 1")
    e(f"buffer_store_dwordx2 v[2:3], off, s[{SDBG}:{SDBG+3}], 0 sc1")
    e("s_mov_b64 exec, -1")
    e("s_nop 1")
    e.label("L_nopub")
    if stamps:
        e(f"v_writelane_b32 v{STV}, s90, 0")
        nst[0] = 1
    for r in range(96):
        e(f"v_mov_b32 v{ACC+r}, 0")
    sSLOTB = sXO
    e(f"s_mov_b32 s{sN}, 0")
    e(f"s_mov_b32 s{sSLOTB}, 0")

    def reads(t, st):
        f = FR[st]
        L = []
        L.append((f"x0_{st}", f"ds_read_b128 {vr(f,4)}, v{vXA+t}"))
        def w(uj):
            a = vA1 if uj == 1 else vA0
            for rd in range(2):
                L.append((f"w{uj}{rd}_{st}", f"ds_read_b64_tr_b16 {vr(f+8+4*uj+2*rd,2)}, v{a} offset:{uj*32 + (16*t+4*rd)*192}"))
        w(0)
        L.append((f"x1_{st}", f"ds_read_b128 {vr(f+4,4)}, v{vXA+t} offset:4096"))
        w(1); w(2)
        return L
    def mfma(k, st):
        uj, mi = k // 2, k % 2
        f = FR[st]
        e.need(f"x{mi}_{st}", f"w{uj}0_{st}", f"w{uj}1_{st}")
        a = ACC + 16*(mi*3+uj)
        if not o.nomfma:
            e(f"v_mfma_f32_32x32x16_bf16 {vr(a,16)}, {vr(f+8+4*uj,4)}, {vr(f+4*mi,4)}, {vr(a,16)}")

    vNC = 254
    e("s_barrier")
    e(f"buffer_load_dwordx2 {vr(vNC,2)}, off, s[{SDBG}:{SDBG+3}], 0 sc1")
    stamp()
    for tag, s in reads(0, 0):
        e.lds(tag, s)
    state0 = list(e.pend)
    e.label("L_p1")
    for t in range(3):
        st = t & 1
        R = reads(t+1, st ^ 1)
        for k in range(6):
            mfma(k, st)
            for tag, s in R[2*k:2*k+2]:
                e.lds(tag, s)
    e.drain()
    mfma(0, 1); mfma(1, 1)
    e(f"s_add_u32 s{sSLOTB}, s{sSLOTB}, 1")
    e(f"s_and_b32 s{sSLOTB}, s{sSLOTB}, 3")
    csel(sT0, SLOT, (-3*SLOT) & 0xffffffff)
    e("s_barrier")
    e(f"v_add_u32 v{vXA}, s{sT0}, v{vXA}")
    e(f"v_add_u32 v{vA0}, s{sT0}, v{vA0}")
    e(f"v_add_u32 v{vA1}, s{sT0}, v{vA1}")
    R = reads(0, 0)
    for tag, s in R[0:3]:
        e.lds(tag, s)
    mfma(2, 1)
    for tag, s in R[3:6]:
        e.lds(tag, s)
    mfma(3, 1)
    for tag, s in R[6:8]:
        e.lds(tag, s)
    for t in range(1, 4):
        e(f"v_add_u32 v{vXA+t}, s{sT0}, v{vXA+t}")
    mfma(4, 1)
    e(f"s_add_u32 s{sN}, s{sN}, 1")
    e(f"s_cmp_lt_u32 s{sN}, 8")
    mfma(5, 1)
    e("s_cbranch_scc1 L_p1")
    assert e.pend == state0, (e.pend, state0)
    e.drain()
    stamp()
    if o.p1only: e("s_branch L_cfin")
    sH0, sH1, sNV = sW1O, sW3O, sXL
    e(f"s_lshl_b32 s{sH0}, s{sMBLK}, 1")
    e(f"s_add_u32 s{sH0}, s{sH0}, s{sWR}")
    e(f"s_mul_i32 s{sH0}, s{sH0}, {2*86}")
    e(f"s_add_u32 s{sH0}, s{sH0}, s{sUST}")
    e(f"s_mul_i32 s{sT1}, s{sWC}, 3")
    e(f"s_add_u32 s{sH0}, s{sH0}, s{sT1}")
    e(f"s_lshl_b32 s{sH0}, s{sH0}, 10")
    e(f"s_add_u32 s{sH1}, s{sH0}, {86*1024}")
    e(f"s_sub_u32 s{sNV}, s{sUCNT}, s{sT1}")
    e(f"s_mov_b32 s{sN}, 0")
    e.label("L_nonce")
    e("s_waitcnt vmcnt(0)")
    e(f"v_readfirstlane_b32 s{sT0}, v{vNC}")
    e(f"s_add_u32 s{sN}, s{sN}, 1")
    e(f"s_cmp_lg_u32 s{sT0}, 0")
    e("s_cbranch_scc1 L_nonce_ok")
    e(f"s_cmp_ge_u32 s{sN}, 0x200000")
    e("s_cbranch_scc1 L_nonce_ok")
    e(f"buffer_load_dwordx2 {vr(vNC,2)}, off, s[{SDBG}:{SDBG+3}], 0 sc1")
    e("s_branch L_nonce")
    e.label("L_nonce_ok")
    e(f"s_mov_b32 s78, 0xbfb8aa3b")
    e(f"s_mov_b32 s79, 0xbfb8aa3b")
    e("s_nop 7")
    T = 96
    latest = []
    for uj in range(3):
        if uj == 1:
            e(f"s_cmp_lt_u32 s{sNV}, 2")
            e("s_cbranch_scc1 L_epi_done")
        for mi in range(2):
            a = ACC + 16*(mi*3+uj)
            tt = T + 8*mi
            for r in range(0, 8, 2):
                e(f"v_pk_mul_f32 {vr(tt+r,2)}, {vr(a+r,2)}, s[78:79]")
            for r in range(8):
                e(f"v_exp_f32 v{tt+r}, v{tt+r}")
            for r in range(0, 8, 2):
                e(f"v_pk_mul_f32 {vr(a+r,2)}, {vr(a+r,2)}, {vr(a+8+r,2)}")
            for r in range(0, 8, 2):
                e(f"v_pk_add_f32 {vr(tt+r,2)}, {vr(tt+r,2)}, 1.0 op_sel_hi:[1,0]")
            for r in range(8):
                e(f"v_rcp_f32 v{tt+r}, v{tt+r}")
            e("s_nop 0")
            for r in range(0, 8, 2):
                e(f"v_pk_mul_f32 {vr(a+r,2)}, {vr(a+r,2)}, {vr(tt+r,2)}")
            for r in range(4):
                e(f"v_cvt_pk_bf16_f32 v{a+8+r}, v{a+2*r}, v{a+2*r+1}")
            so = sH0 if mi == 0 else sH1
            st = f"buffer_store_dwordx4 {vr(a+8,4)}, v{vL16}, s[{SH}:{SH+3}], s{so} offen offset:{1024*uj} {o.stfl}"
            if o.late and uj == 0:
                latest.append(st)
            else:
                e(st)
    e.label("L_epi_done")
    for st in latest:
        e(st)
    e("s_barrier")
    stamp()
    HR = 0
    AC2 = 172
    WB = 204
    NB = 4
    vBA = [[240, 241], [242, 243]]
    vBF = [244, 245]
    sG, sHB, sS0, sS1, sHO = sW1O, sW3O, sXL, sW1L, sW3L
    for r in range(32):
        e(f"v_mov_b32 v{AC2+r}, 0")
    e(f"s_lshl_b32 s{sHB}, s{sM64}, 1")
    e(f"s_add_u32 s{sHB}, s{sHB}, s{sWR}")
    e(f"s_mul_i32 s{sHB}, s{sHB}, 86")
    e(f"s_mul_i32 s{sT1}, s{sWC}, 43")
    e(f"s_add_u32 s{sHB}, s{sHB}, s{sT1}")
    e(f"s_lshl_b32 s{sHB}, s{sHB}, 10")
    e(f"s_lshl_b32 s{sT0}, s{sWC}, 1")
    e(f"s_sub_u32 s{sT0}, s{sT0}, s{sR4}")
    e(f"s_and_b32 s{sS0}, s{sT0}, 3")
    e(f"s_mul_i32 s{sS0}, s{sS0}, {SLOT}")
    e(f"s_add_u32 s{sT0}, s{sT0}, 1")
    e(f"s_and_b32 s{sS1}, s{sT0}, 3")
    e(f"s_mul_i32 s{sS1}, s{sS1}, {SLOT}")
    e(f"s_sub_u32 s{sS1}, s{sS1}, {4*10240}")
    rho = sNBLK
    e(f"s_mov_b32 s{sG}, s{rho}")
    vL16b = 248
    e(f"v_add_u32 v{vL16b}, 4096, v{vL16}")
    def setaddr(dst):
        e(f"s_cmp_lt_u32 s{sG}, 4")
        e(f"s_cselect_b32 s{sT0}, s{sS0}, s{sS1}")
        e(f"s_mul_i32 s{sT1}, s{sG}, 10240")
        e(f"s_add_u32 s{sT0}, s{sT0}, s{sT1}")
        e(f"v_add_u32 v{dst[0]}, s{sT0}, v{vB}")
        e(f"s_add_u32 s{sG}, s{sG}, 1")
        e(f"s_and_b32 s{sG}, s{sG}, 7")
        e(f"v_xor_b32 v{dst[1]}, 64, v{dst[0]}")
    setaddr(vBA[0])
    e(f"v_mov_b32 v{vBF[0]}, v{vBA[0][0]}")
    e(f"v_mov_b32 v{vBF[1]}, v{vBA[0][1]}")
    setaddr(vBA[1])
    e(f"s_lshl_b32 s{sT2}, s{sMBLK}, 1")
    e(f"s_add_u32 s{sT2}, s{sT2}, s{sWR}")
    e(f"s_mul_i32 s{sT2}, s{sT2}, {o.fs1}")
    e(f"s_lshl_b32 s{sT3}, s{sSLICE}, 1")
    e(f"s_add_u32 s{sT3}, s{sT3}, s{sWC}")
    e(f"s_mul_i32 s{sT3}, s{sT3}, {o.fs2}")
    e(f"s_add_u32 s{sT2}, s{sT2}, s{sT3}")
    e(f"s_add_u32 s{sT2}, s{sT2}, {FLAGB}")
    e(f"s_mul_i32 s{sHO}, s{rho}, 5120")
    e(f"s_add_u32 s{sHO}, s{sHO}, s{sHB}")
    e(f"s_add_u32 s{sT3}, s{sHB}, {10*4096}")
    e(f"s_mov_b32 s{sN}, 0")
    e("s_mov_b64 exec, 1")
    e("s_waitcnt vmcnt(0)")
    e(f"buffer_store_dwordx2 {vr(vNC,2)}, off, s[{SH}:{SH+3}], s{sT2} sc1")
    stamp()
    e("s_mov_b64 exec, -1")
    e("s_barrier")
    stamp()
    def w2reads(uu):
        b = WB + 8*(uu % NB)
        g, k = uu // 5, uu % 5
        A = vBA[g & 1] if g < 8 else vBF
        L = []
        for dj in range(2):
            for rd in range(2):
                L.append((f"u{uu}_{dj}{rd}", f"ds_read_b64_tr_b16 {vr(b+4*dj+2*rd,2)}, v{A[dj]} offset:{k*2048+1024*rd}"))
        return L
    def hload(uu):
        so = sHO if uu < 40 else sT3
        k = uu % 5
        va, off = (vL16, 1024*k) if k < 4 else (vL16b, 0)
        e(f"buffer_load_dwordx4 {vr(HR+4*uu,4)}, v{va}, s[{SH}:{SH+3}], s{so} offen offset:{off} sc1")
        if k == 4 and uu < 39:
            e(f"s_add_u32 s{sHO}, s{sHO}, 5120")
            e(f"s_cmp_eq_u32 s{sHO}, s{sT3}")
            e(f"s_cselect_b32 s{sHO}, s{sHB}, s{sHO}")
    PD = o.pd
    order = [0, 1, 2, 3, 4, 40, 41, 42] + list(range(5, 40))
    pos = {u: i for i, u in enumerate(order)}
    issued = 0
    for i in range(PD):
        hload(order[i]); issued += 1
    for uu in range(3):
        for tag, s in w2reads(uu):
            e.lds(tag, s)
    e.drain()
    e("s_barrier")
    stamp()
    for uu in range(43):
        R = w2reads(uu+3) if uu + 3 < 43 else []
        b = WB + 8*(uu % NB)
        if uu < 40:
            assert pos[uu] < issued
            e(f"s_waitcnt vmcnt({issued - pos[uu] - 1})")
        for dj in range(2):
            e.need(f"u{uu}_{dj}0", f"u{uu}_{dj}1")
            a = AC2 + 16*dj
            e(f"v_mfma_f32_32x32x16_bf16 {vr(a,16)}, {vr(b+4*dj,4)}, {vr(HR+4*uu,4)}, {vr(a,16)}")
            for tag, s in R[2*dj:2*dj+2]:
                e.lds(tag, s)
        if issued < 43:
            hload(order[issued]); issued += 1
        if uu == 20:
            e("s_barrier")
        if uu % 5 == 1 and uu // 5 + 2 < 8:
            setaddr(vBA[(uu // 5) & 1])
    stamp()
    e("s_barrier")
    e(f"s_lshl_b32 s{sT0}, s{sWAVE}, 12")
    e(f"v_add_u32 v0, s{sT0}, v{vL16}")
    e(f"s_xor_b32 s{sT0}, s{sT0}, {2*4096}")
    e(f"v_add_u32 v1, s{sT0}, v{vL16}")
    e("s_nop 7")
    e(f"s_cmp_eq_u32 s{sWC}, 0")
    e("s_cbranch_scc1 L_kh0")
    for j in range(4):
        e(f"ds_write_b128 v0, {vr(AC2+4*j,4)} offset:{1024*j}")
    for r in range(16):
        e(f"v_mov_b32 v{16+r}, v{AC2+16+r}")
    e("s_branch L_khj")
    e.label("L_kh0")
    for j in range(4):
        e(f"ds_write_b128 v0, {vr(AC2+16+4*j,4)} offset:{1024*j}")
    for r in range(16):
        e(f"v_mov_b32 v{16+r}, v{AC2+r}")
    e.label("L_khj")
    e("s_waitcnt lgkmcnt(0)")
    e("s_barrier")
    for j in range(4):
        e(f"ds_read_b128 {vr(32+4*j,4)}, v1 offset:{1024*j}")
    e(f"v_and_b32 v2, 31, v{vLANE}")
    e(f"v_lshrrev_b32 v3, 5, v{vLANE}")
    e(f"v_lshlrev_b32 v2, 10, v2")
    e(f"v_lshl_add_u32 v2, v3, 4, v2")
    e(f"s_lshl_b32 s{sT0}, s{sM64}, 1")
    e(f"s_add_u32 s{sT0}, s{sT0}, s{sWR}")
    e(f"s_lshl_b32 s{sT0}, s{sT0}, 15")
    e(f"s_lshl_b32 s{sT1}, s{sNBLK}, 7")
    e(f"s_add_u32 s{sT0}, s{sT0}, s{sT1}")
    e(f"s_lshl_b32 s{sT1}, s{sWC}, 6")
    e(f"s_add_u32 s{sT0}, s{sT0}, s{sT1}")
    e("s_waitcnt lgkmcnt(0)")
    for r in range(16):
        e(f"v_add_f32 v{16+r}, v{16+r}, v{32+r}")
    for r in range(8):
        e(f"v_cvt_pk_bf16_f32 v{48+r}, v{16+2*r}, v{16+2*r+1}")
    e("s_nop 1")
    e("v_permlane32_swap_b32 v48, v50")
    e("v_permlane32_swap_b32 v49, v51")
    e("v_permlane32_swap_b32 v52, v54")
    e("v_permlane32_swap_b32 v53, v55")
    e("s_nop 1")
    e(f"buffer_store_dwordx4 v[48:51], v2, s[{SOUT}:{SOUT+3}], s{sT0} offen")
    e(f"buffer_store_dwordx4 v[52:55], v2, s[{SOUT}:{SOUT+3}], s{sT0} offen offset:32")
    e.label("L_cfin")
    if stamps:
        stamp()
        e("s_waitcnt vmcnt(0)")
        stamp()
        e(f"s_cmp_lg_u32 s{sWAVE}, 0")
        e("s_cbranch_scc1 L_end")
        stamp_out(0x800000)
    e.label("L_end")
    e("s_endpgm")

    head = f"""; Fused SwiGLU MLP: out = (silu(x@w1) * (x@w3)) @ w2   (bf16, M=2048 D=512 F=1376)
; @launch grid=(256,1,1) block=(512,1,1) lds=163840
.amdgcn_target "amdgcn-amd-amdhsa--gfx950"
.text
.globl {NAME}_kernel
.p2align 8
.type {NAME}_kernel,@function
{NAME}_kernel:
"""
    tail = f""".section .rodata,"a"
.p2align 6
.amdhsa_kernel {NAME}_kernel
  .amdhsa_next_free_vgpr 256
  .amdhsa_next_free_sgpr 102
  .amdhsa_accum_offset 256
  .amdhsa_group_segment_fixed_size 0
  .amdhsa_kernarg_size 56
  .amdhsa_user_sgpr_count 2
  .amdhsa_user_sgpr_kernarg_segment_ptr 1
  .amdhsa_system_sgpr_workgroup_id_x 1
.end_amdhsa_kernel
"""
    return head + e.text() + tail

if __name__ == "__main__":
    ap = argparse.ArgumentParser()
    ap.add_argument("-o", default="/dev/stdout")
    for f in ("stamps", "nomfma", "p1only", "noshare", "norot2", "late", "early1"):
        ap.add_argument("--" + f, action="store_true")
    ap.add_argument("--fs1", type=int, default=4096)
    ap.add_argument("--pd", type=int, default=12)
    ap.add_argument("--thr", type=int, default=7)
    ap.add_argument("--stfl", default="sc1")
    ap.add_argument("--xfl", default="")
    ap.add_argument("--wfl", default="")
    ap.add_argument("--w2fl", default="")
    ap.add_argument("--rotmask", type=int, default=7)
    ap.add_argument("--fs2", type=int, default=8)
    a = ap.parse_args()
    open(a.o, "w").write(gen(a))
```

```python
import sys, argparse, re

NAME = "standalone__glu_gated_swiglu__prompt"

class E:
    def __init__(self):
        self.lines = []
        self.pend = []
    def __call__(self, s):
        self.lines.append("    " + s)
    def label(self, l):
        self.lines.append(l + ":")
    def c(self, s):
        self.lines.append("    ; " + s)
    def lds(self, tag, s):
        self.pend.append(tag)
        assert len(self.pend) <= 15, "lgkm overflow"
        self(s)
    def need(self, *tags):
        idx = -1
        for t in tags:
            if t in self.pend:
                idx = max(idx, self.pend.index(t))
        if idx >= 0:
            n = len(self.pend) - 1 - idx
            self(f"s_waitcnt lgkmcnt({n})")
            self.pend = self.pend[idx+1:]
    def drain(self):
        self("s_waitcnt lgkmcnt(0)")
        self.pend = []
    def text(self):
        return "\n".join(self.lines) + "\n"

def vr(a, n):
    return f"v[{a}:{a+n-1}]"

SLOT = 40960
W1B = 16384
FLAGB = 0x600000
WROW = 2752

def gen(o):
    e = E()
    stamps = o.stamps
    SX, SW1, SW3, SW2, SOUT, SDBG, SH = 20, 24, 28, 32, 36, 40, 44
    sWAVE, sXCD, sJJ, sHALF, sSLICE, sMBLK, sUST, sUCNT, sM128, sM64, sNBLK = range(50, 61)
    sT0, sT1, sT2, sT3, sN, sR4, sLW, sCNT = range(61, 69)
    WSB = 0x10000000 if stamps else (FLAGB + 32*o.fs1)
    STV = 252
    nst = [0]
    def stamp():
        if stamps:
            n = nst[0]
            assert n < 31
            e("s_memrealtime s[94:95]")
            e("s_memtime s[92:93]")
            e("s_waitcnt lgkmcnt(0)")
            e.pend = []
            e("s_sub_u32 s92, s92, s98")
            e(f"v_writelane_b32 v{STV}, s94, {n}")
            e(f"v_writelane_b32 v{STV}, s92, {32+n}")
            nst[0] += 1
    def stamp_out(base):
        e("s_mov_b64 exec, -1")
        e(f"s_lshl_b32 s{sT0}, s2, 8")
        e(f"s_add_u32 s{sT0}, s{sT0}, {base}")
        e("v_mbcnt_lo_u32_b32 v5, -1, 0")
        e("v_mbcnt_hi_u32_b32 v5, -1, v5")
        e("v_lshlrev_b32 v5, 2, v5")
        e(f"buffer_store_dword v{STV}, v5, s[{SH}:{SH+3}], s{sT0} offen")
    def csel(dst, a, b):
        e(f"s_mov_b32 s{dst}, {b}")
        e(f"s_cmov_b32 s{dst}, {a}")
    def srd(base, ptr, nbytes):
        e(f"s_mov_b32 s{base}, s{ptr}")
        e(f"s_and_b32 s{base+1}, s{ptr+1}, 0xffff")
        e(f"s_mov_b32 s{base+2}, {nbytes}")
        e(f"s_mov_b32 s{base+3}, 0x20000")

    e("s_cmp_ge_u32 s2, 256")
    e("s_cbranch_scc1 L_end")
    e("s_load_dwordx8 s[4:11], s[0:1], 0")
    e("s_load_dwordx4 s[12:15], s[0:1], 32")
    e("s_load_dwordx2 s[16:17], s[0:1], 48")
    if stamps:
        e("s_memtime s[98:99]")
        e("s_memrealtime s[90:91]")
        e(f"v_mov_b32 v{STV}, 0")
    e("v_lshrrev_b32 v1, 6, v0")
    e("v_and_b32 v0, 63, v0")
    e(f"s_and_b32 s{sXCD}, s2, 7")
    e(f"v_readfirstlane_b32 s{sWAVE}, v1")
    e(f"s_lshr_b32 s{sJJ}, s2, 3")
    e(f"s_lshr_b32 s{sHALF}, s{sJJ}, 4")
    e(f"s_and_b32 s{sJJ}, s{sJJ}, 15")
    e(f"s_and_b32 s{sT0}, s{sXCD}, 3")
    if o.nobal:
        e(f"s_and_b32 s{sT1}, s{sJJ}, 3")
    else:
        e(f"s_lshr_b32 s{sT1}, s2, 6")
        e(f"s_add_u32 s{sT1}, s{sT1}, s{sJJ}")
        e(f"s_and_b32 s{sT1}, s{sT1}, 3")
    e(f"s_lshl_b32 s{sSLICE}, s{sT0}, 2")
    e(f"s_add_u32 s{sSLICE}, s{sSLICE}, s{sT1}")
    e(f"s_mul_i32 s{sUST}, s{sT0}, 22")
    e(f"s_mul_i32 s{sT2}, s{sT1}, 6")
    e(f"s_add_u32 s{sUST}, s{sUST}, s{sT2}")
    e(f"s_cmp_eq_u32 s{sSLICE}, 15")
    e(f"s_cselect_b32 s{sT2}, 2, 0")
    e(f"s_sub_u32 s{sUST}, s{sUST}, s{sT2}")
    e(f"s_cmp_eq_u32 s{sT1}, 3")
    e(f"s_cselect_b32 s{sUCNT}, 4, 6")
    e(f"s_cmp_eq_u32 s{sSLICE}, 14")
    e(f"s_cselect_b32 s{sUCNT}, 4, s{sUCNT}")
    e(f"s_lshl_b32 s{sMBLK}, s{sHALF}, 3")
    e(f"s_and_b32 s{sT0}, s{sXCD}, 4")
    e(f"s_add_u32 s{sMBLK}, s{sMBLK}, s{sT0}")
    e(f"s_lshr_b32 s{sT0}, s{sJJ}, 2")
    e(f"s_add_u32 s{sMBLK}, s{sMBLK}, s{sT0}")
    def p2ids():
        e(f"s_lshl_b32 s{sM128}, s{sHALF}, 3")
        e(f"s_add_u32 s{sM128}, s{sM128}, s{sXCD}")
        e(f"s_lshl_b32 s{sM64}, s{sM128}, 1")
        e(f"s_lshr_b32 s{sT2}, s{sJJ}, 3")
        e(f"s_add_u32 s{sM64}, s{sM64}, s{sT2}")
        e(f"s_and_b32 s{sNBLK}, s{sJJ}, 7")
        e(f"s_lshl_b32 s{sR4}, s{sHALF}, 1")
        e(f"s_add_u32 s{sR4}, s{sR4}, s{sT2}")
    e(f"s_and_b32 s{sLW}, s{sWAVE}, 3")
    e(f"s_cmp_ge_u32 s{sWAVE}, 4")
    e("s_cbranch_scc1 L_compute" if o.ldfirst else "s_cbranch_scc0 L_compute")

    sO, sLA, sLB, sW2O, sW2L, sSO = 69, 73, 77, 81, 85, 86
    vP = [8, 9]
    vX = 10; vWA, vWB = 10, 11
    vW2 = 20
    vFIN = 32
    vSTG = 64
    vW2S = 128
    if o.lprio: e(f"s_setprio {o.lprio}")
    e("v_lshrrev_b32 v2, 3, v0")
    e("v_and_b32 v3, 7, v0")
    e("v_lshrrev_b32 v4, 4, v0")
    e(f"s_cmp_eq_u32 s{sLW}, 3")
    e("s_cbranch_scc1 L_xload")

    scheds = [x.split() for x in o.sched.split("|")]
    tailtok = o.tail.split()
    assert tailtok[0] == "J"
    def programs(kind):
        ng = len(scheds)
        if ng > 1:
            e(f"s_lshr_b32 s{sCNT}, s2, 5")
            if ng == 2:
                e(f"s_add_u32 s{sCNT}, s{sCNT}, s{sSLICE}")
                e(f"s_and_b32 s{sCNT}, s{sCNT}, 1")
            elif ng == 4:
                e(f"s_and_b32 s{sCNT}, s{sCNT}, 3")
            else:
                e(f"s_mul_i32 s{sT0}, s{sCNT}, 43")
                e(f"s_lshr_b32 s{sT0}, s{sT0}, 7")
                e(f"s_mul_i32 s{sT0}, s{sT0}, 3")
                e(f"s_sub_u32 s{sCNT}, s{sCNT}, s{sT0}")
            for g in range(1, ng):
                e(f"s_cmp_eq_u32 s{sCNT}, {g}")
                e(f"s_cbranch_scc1 L_{kind}{g}")
        for g in range(ng):
            e.label(f"L_{kind}{g}")
            program(kind, scheds[g] + tailtok, kind == "x" and g == ng - 1)

    def program(kind, sched, last):
        ops = []
        st = dict(bar=-1, dsw=False, w2=False, nstamp=1, done=-1)
        staged = {}
        w2staged = {}
        def lst():
            if stamps and not o.nols:
                nst[0] = st["nstamp"]; stamp(); st["nstamp"] = nst[0]
        def vmem(tag, s):
            ops.append(tag); e(s)
        def wait_for(pred):
            idx = max([i for i, t in enumerate(ops) if pred(t)], default=-1)
            if idx <= st["done"]:
                return
            n = min(63, len(ops) - 1 - idx)
            st["done"] = len(ops) - 1 - n
            e(f"s_waitcnt vmcnt({n})")
        def slot_ok(n):
            return n <= 3 or st["bar"] >= n - 3
        def xblock(n, j, regs=None):
            e(f"s_add_u32 s{sSO}, s{sO+j}, {128*n}")
            if regs is None:
                assert slot_ok(n), f"slot of stage {n} not free"
                e(f"s_add_u32 m0, s{sLA+j}, {(n%4)*SLOT}")
                e("s_nop 0")
                for i in range(4):
                    vmem(("st", n), f"buffer_load_dwordx4 v{vX+i}, s[{SX}:{SX+3}], s{sSO} offen offset:{1024*i} lds")
            else:
                for i in range(4):
                    vmem(("rg", n), f"buffer_load_dwordx4 {vr(regs+4*i,4)}, v{vX+i}, s[{SX}:{SX+3}], s{sSO} offen offset:{1024*i}")
        lastso = [None]
        def wblock(n, j, regs=None):
            k, b = j >> 1, j & 1
            if lastso[0] != (n, k):
                e(f"s_add_u32 s{sSO}, s{sO+k}, {64*WROW*n}")
                lastso[0] = (n, k)
            S = SW3 if b else SW1
            v = vWB if b else vWA
            if regs is None:
                assert slot_ok(n), f"slot of stage {n} not free"
                e(f"s_add_u32 m0, s{(sLB if b else sLA)+k}, {(n%4)*SLOT}")
                e("s_nop 0")
                vmem(("st", n), f"buffer_load_dwordx4 v{v}, s[{S}:{S+3}], s{sSO} offen lds")
            else:
                vmem(("rg", n), f"buffer_load_dwordx4 {vr(regs,4)}, v{v}, s[{S}:{S+3}], s{sSO} offen")
        block = xblock if kind == "x" else wblock
        nblk = 4 if kind == "x" else 8
        nshare = 4 if kind == "x" else 1
        def put(n):
            assert slot_ok(n)
            wait_for(lambda t: t == ("rg", n))
            r = staged.pop(n)
            for i in range(nshare):
                e(f"ds_write_b128 v{vP[(n%4)>>1]}, {vr(r+4*i,4)} offset:{(n%2)*SLOT + 1024*i}")
            st["dsw"] = True
        def w2setup():
            if st["w2"]: return
            st["w2"] = True
            lastso[0] = None
            p2ids()
            e("v_and_b32 v5, 1, v4")
            e("v_lshlrev_b32 v5, 2, v5")
            e("v_xor_b32 v5, v5, v3")
            e("v_lshlrev_b32 v5, 4, v5")
            e("v_lshl_add_u32 v5, v2, 10, v5")
            e(f"s_lshl_b32 s{sT0}, s{sNBLK}, 7")
            e(f"v_add_u32 v{vW2}, s{sT0}, v5")
            for i in range(1, 4):
                e(f"v_add_u32 v{vW2+i}, {7168*i}, v{vW2}")
            srd(SW2, 10, 1409024)
            srd(SDBG, 14, 256)
            srd(SH, 16, WSB)
            e(f"s_mul_i32 s{sW2L}, s{sLW}, 10240")
            e(f"s_mul_i32 s{sT1}, s{sLW}, 80")
            for c in range(4):
                e(f"s_add_u32 s{sT0}, s{sR4}, {c}")
                e(f"s_and_b32 s{sT0}, s{sT0}, 3")
                e(f"s_mul_i32 s{sT2}, s{sT0}, 320")
                e(f"s_cmp_ge_u32 s{sT0}, 2")
                e(f"s_cselect_b32 s{sT0}, 48, 0")
                e(f"s_add_u32 s{sT2}, s{sT2}, s{sT0}")
                e(f"s_add_u32 s{sT2}, s{sT2}, s{sT1}")
                e(f"s_lshl_b32 s{sW2O+c}, s{sT2}, 10")
        def w2(c, ks):
            w2setup()
            lastso[0] = None
            direct = st["bar"] >= 5 + c
            g = None
            for k in ks:
                if k >> 2 != g:
                    g = k >> 2
                    e(f"s_add_u32 s{sSO}, s{sW2O+c}, {32768*g}")
                    if direct:
                        e(f"s_add_u32 m0, s{sW2L}, {c*SLOT + 4096*g}")
                        e("s_nop 0")
                if direct:
                    vmem(("w2", c), f"buffer_load_dwordx4 v{vW2+(k&3)}, s[{SW2}:{SW2+3}], s{sSO} offen offset:{1024*(k&3)} lds")
                else:
                    assert c == 0
                    w2staged[k] = vW2S + 4*k
                    vmem(("w2r", c), f"buffer_load_dwordx4 {vr(vW2S+4*k,4)}, v{vW2+(k&3)}, s[{SW2}:{SW2+3}], s{sSO} offen offset:{1024*(k&3)}")
        for tok in sched:
            m = re.fullmatch(r"([A-Z])(\d?)([ab]?)", tok)
            t, n, h = m.group(1), int(m.group(2)) if m.group(2) else None, m.group(3)
            if o.noload and t in "SR" and n >= o.noload:
                continue
            if t == "S":
                if slot_ok(n):
                    block(n, 0)
                else:
                    r = vSTG + 16*(n-4)
                    assert n >= 4
                    staged[n] = r
                    block(n, 0, r)
            elif t == "R":
                js = list(range(1, nblk))
                half = 2 if kind == "x" else 4
                if h == "a": js = js[:half]
                if h == "b": js = js[half:]
                for j in js:
                    block(n, j)
            elif t in "DTU":
                js = {"D": [0, 1], "T": list(range(2, nblk)), "U": list(range(nblk))}[t]
                half = len(js) // 2
                if h == "a": js = js[:half]
                if h == "b": js = js[half:]
                for j in js:
                    block(n, j)
            elif t == "P":
                put(n)
            elif t == "B":
                if n in staged: put(n)
                if n <= 7:
                    wait_for(lambda t: t == ("st", n))
                if st["dsw"]:
                    e("s_waitcnt lgkmcnt(0)"); st["dsw"] = False
                lst()
                e("s_barrier")
                lst()
                assert st["bar"] == n - 1
                st["bar"] = n
            elif t == "W":
                ks = list(range(10))
                if h == "a": ks = ks[:5]
                if h == "b": ks = ks[5:]
                w2(n, ks)
            elif t == "Q":
                assert st["bar"] >= 5
                wait_for(lambda t: t == ("w2r", 0))
                e(f"v_lshlrev_b32 v6, 4, v0")
                e(f"v_add_u32 v6, s{sW2L}, v6")
                for k in sorted(w2staged):
                    e(f"ds_write_b128 v6, {vr(w2staged[k],4)} offset:{1024*k}")
                st["dsw"] = True
                w2staged.clear()
            elif t == "F":
                w2setup()
                lastso[0] = None
                e(f"s_lshr_b32 s{sT0}, s{sLW}, 1")
                e(f"s_and_b32 s{sT2}, s{sLW}, 1")
                e(f"s_mul_i32 s{sT0}, s{sT0}, 688")
                e(f"s_mul_i32 s{sT2}, s{sT2}, 24")
                e(f"s_add_u32 s{sT0}, s{sT0}, s{sT2}")
                e(f"s_add_u32 s{sT0}, s{sT0}, 640")
                e(f"s_lshl_b32 s{sT0}, s{sT0}, 10")
                ii = {"": [0, 1, 2], "a": [0, 1], "b": [2]}[h]
                for i in ii:
                    vmem(("fin",), f"buffer_load_dwordx4 {vr(vFIN+4*i,4)}, v{vW2+i}, s[{SW2}:{SW2+3}], s{sT0} offen offset:{1024*i}")
            elif t == "N":
                w2setup()
                vmem(("nonce",), f"buffer_load_dwordx2 v[28:29], off, s[{SDBG}:{SDBG+3}], 0 sc1")
            elif t == "A":
                assert st["bar"] == 8
                lst()
                e("s_barrier")
            elif t == "J":
                assert not staged and not w2staged
                if st["dsw"]:
                    e("s_waitcnt lgkmcnt(0)"); st["dsw"] = False
                if not last:
                    e("s_branch L_join")
                    return
                e.label("L_join")
                if o.lprio: e("s_setprio 0")
                ops[:] = [("old",)]
                st["done"] = -1
            else:
                raise ValueError(tok)
        assert not staged and not w2staged
        nst[0] = st["nstamp"]

    e(f"s_lshl_b32 s{sT2}, s{sHALF}, 2")
    e(f"s_add_u32 s{sT2}, s{sT2}, s{sT0}")
    e(f"s_lshl_b32 s{sT3}, s{sLW}, 6")
    e(f"v_add_u32 v5, s{sT3}, v0")
    e(f"v_mul_u32_u24 v6, 43691, v5")
    e(f"v_lshrrev_b32 v6, 19, v6")
    e(f"v_mul_u32_u24 v7, 12, v6")
    e(f"v_sub_u32 v7, v5, v7")
    if not o.nopar:
        e(f"s_bfe_u32 s{sT3}, s{sUST}, 0x10001")
        e(f"v_xor_b32 v6, s{sT3}, v6")
    e(f"v_mul_u32_u24 v6, {WROW}, v6")
    e(f"s_lshl_b32 s{sT3}, s{sUCNT}, 1")
    e(f"v_cmp_le_u32 vcc, s{sT3}, v7")
    e(f"v_lshl_add_u32 v6, v7, 4, v6")
    e(f"v_mov_b32 v7, 0x40000000")
    e(f"s_and_b32 s{sN}, s{sT2}, 1")
    e(f"v_cndmask_b32 v6, v6, v7, vcc")
    e(f"s_lshl_b32 s{sT3}, s{sN}, 5")
    e(f"v_xor_b32 v{vWA}, s{sT3}, v6")
    e(f"v_xor_b32 v{vWB}, 32, v{vWA}")
    e(f"s_lshr_b32 s{sT2}, s{sT2}, 1")
    e(f"s_lshl_b32 s{sT0}, s{sUST}, 5")
    e(f"s_lshl_b32 s{sT1}, s{sLW}, 10")
    e(f"s_mul_i32 s{sT3}, s{sN}, 12288")
    e(f"s_add_u32 s{sT1}, s{sT1}, s{sT3}")
    e(f"s_add_u32 s{sT1}, s{sT1}, {W1B}")
    e(f"s_mul_i32 s{sT3}, s{sN}, {-24576 & 0xffffffff}")
    e(f"s_add_u32 s{sT3}, s{sT3}, 12288")
    for k in range(4):
        e(f"s_mul_i32 s{sO+k}, s{sT2}, {16*WROW}")
        e(f"s_add_u32 s{sO+k}, s{sO+k}, s{sT0}")
        e(f"s_mul_i32 s{sLA+k}, s{sT2}, 3072")
        e(f"s_add_u32 s{sLA+k}, s{sLA+k}, s{sT1}")
        e(f"s_add_u32 s{sLB+k}, s{sLA+k}, s{sT3}")
        if k < 3:
            e(f"s_add_u32 s{sT2}, s{sT2}, 1")
            e(f"s_and_b32 s{sT2}, s{sT2}, 3")
    e(f"s_mov_b32 s{SW1+2}, 1409024")
    e(f"s_mov_b32 s{SW1+3}, 0x20000")
    e(f"s_mov_b32 s{SW3+2}, 1409024")
    e(f"s_mov_b32 s{SW3+3}, 0x20000")
    e(f"v_lshlrev_b32 v{vP[0]}, 4, v0")
    e(f"v_add_u32 v{vP[0]}, s{sLA}, v{vP[0]}")
    e(f"v_add_u32 v{vP[1]}, {2*SLOT}, v{vP[0]}")
    e(f"s_cmp_eq_u32 s{sN}, 0")
    e("s_waitcnt lgkmcnt(0)")
    e(f"s_cselect_b32 s{SW1}, s6, s8")
    e(f"s_cselect_b32 s{SW1+1}, s7, s9")
    e(f"s_cselect_b32 s{SW3}, s8, s6")
    e(f"s_cselect_b32 s{SW3+1}, s9, s7")
    e(f"s_and_b32 s{SW1+1}, s{SW1+1}, 0xffff")
    e(f"s_and_b32 s{SW3+1}, s{SW3+1}, 0xffff")
    if stamps:
        e(f"v_writelane_b32 v{STV}, s90, 0")
    programs("w")

    e.label("L_xload")
    e(f"v_xor_b32 v5, v4, v3")
    e(f"v_lshlrev_b32 v5, 4, v5")
    e(f"v_lshl_add_u32 v{vX}, v2, 10, v5")
    e(f"v_xor_b32 v5, 64, v{vX}")
    e(f"v_add_u32 v{vX+1}, {7168}, v5")
    e(f"v_add_u32 v{vX+2}, {2*7168}, v{vX}")
    e(f"v_add_u32 v{vX+3}, {3*7168}, v5")
    e(f"s_lshl_b32 s{sT0}, s{sMBLK}, 17")
    for j in range(4):
        e(f"s_lshl_b32 s{sLA+j}, s{sT1}, 12")
        e(f"s_lshl_b32 s{sO+j}, s{sT1}, 15")
        e(f"s_add_u32 s{sO+j}, s{sO+j}, s{sT0}")
        if j < 3:
            e(f"s_add_u32 s{sT1}, s{sT1}, 1")
            e(f"s_and_b32 s{sT1}, s{sT1}, 3")
    e(f"s_mov_b32 s{SX+2}, 2097152")
    e(f"s_mov_b32 s{SX+3}, 0x20000")
    e(f"v_lshlrev_b32 v{vP[0]}, 4, v0")
    e(f"v_add_u32 v{vP[0]}, s{sLA}, v{vP[0]}")
    e(f"v_add_u32 v{vP[1]}, {2*SLOT}, v{vP[0]}")
    e("s_waitcnt lgkmcnt(0)")
    e(f"s_mov_b32 s{SX}, s4")
    e(f"s_and_b32 s{SX+1}, s5, 0xffff")
    if stamps:
        e(f"v_writelane_b32 v{STV}, s90, 0")
    programs("x")
    stamp()
    e(f"s_and_b32 s{sT1}, s{sLW}, 2")
    e(f"s_lshr_b32 s{sT2}, s{sNBLK}, 2")
    e(f"s_add_u32 s{sT1}, s{sT1}, s{sT2}")
    e(f"s_sub_u32 s{sT1}, s{sT1}, s{sR4}")
    e(f"s_and_b32 s{sT1}, s{sT1}, 3")
    e(f"s_mul_i32 s{sT1}, s{sT1}, {SLOT}")
    e(f"s_and_b32 s{sT2}, s{sNBLK}, 3")
    e(f"s_mul_i32 s{sT2}, s{sT2}, 10240")
    e(f"s_add_u32 s{sT1}, s{sT1}, s{sT2}")
    e(f"s_and_b32 s{sT2}, s{sLW}, 1")
    e(f"s_mul_i32 s{sT3}, s{sT2}, 3072")
    e(f"s_add_u32 s{sT1}, s{sT1}, s{sT3}")
    e(f"v_lshlrev_b32 v6, 4, v0")
    e(f"v_add_u32 v6, s{sT1}, v6")
    e(f"s_cmp_lg_u32 s{sLW}, 0")
    e("s_cbranch_scc1 L_nopoll")
    e(f"s_mul_i32 s{sT0}, s{sM64}, {o.fs1}")
    e(f"s_add_u32 s{sT0}, s{sT0}, {FLAGB}")
    e(f"v_mul_u32_u24 v5, {o.fs2}, v0")
    e(f"s_mov_b32 s{sCNT}, 0")
    e("s_mov_b64 exec, 0xffffffff")
    e.label("L_poll")
    e(f"buffer_load_dwordx2 v[24:25], v5, s[{SH}:{SH+3}], s{sT0} offen sc1")
    e(f"s_add_u32 s{sCNT}, s{sCNT}, 1")
    e("s_waitcnt vmcnt(0)")
    e(f"v_readfirstlane_b32 s{sT1}, v28")
    e("v_cmp_ne_u64 vcc, v[24:25], v[28:29]")
    e(f"s_cmp_ge_u32 s{sCNT}, 0x200000")
    e("s_cbranch_scc1 L_polldone")
    e(f"s_cmp_eq_u32 s{sT1}, 0")
    e("s_cbranch_scc1 L_renonce")
    e("s_cbranch_vccnz L_poll")
    e("s_branch L_polldone")
    e.label("L_renonce")
    e(f"buffer_load_dwordx2 v[28:29], off, s[{SDBG}:{SDBG+3}], 0 sc1")
    e("s_branch L_poll")
    e.label("L_polldone")
    e("s_mov_b64 exec, -1")
    if stamps: e(f"v_writelane_b32 v{STV}, s{sCNT}, 31")
    e.label("L_nopoll")
    e("s_waitcnt vmcnt(0) lgkmcnt(0)")
    stamp()
    e("s_barrier")
    e("s_barrier")
    for i in range(3):
        e(f"ds_write_b128 v6, {vr(vFIN+4*i,4)} offset:{1024*i}")
    e("s_waitcnt lgkmcnt(0)")
    e("s_barrier")
    e.label("L_ldfin")
    if stamps:
        e(f"s_cmp_lg_u32 s{sLW}, {o.stampw}")
        e("s_cbranch_scc1 L_end")
        stamp_out(0x900000)
    e("s_endpgm")

    e.label("L_compute")
    p2ids()
    ACC = 0
    FR = [96, 116]
    vXA = 240
    vA0, vA1 = 244, 245
    vL16 = 246
    vB = 247
    vT = 248
    vLANE = 253
    vNC = 254
    sWR, sWC = 69, 70
    sSLOTB, sH0, sH1, sNV, sG, sHB, sS0, sS1, sHO, sHE, sEX = range(71, 82)
    sK = 82
    e(f"s_and_b32 s{sWR}, s{sLW}, 1")
    e(f"s_lshr_b32 s{sWC}, s{sLW}, 1")
    e(f"v_and_b32 v{vT}, 31, v0")
    e(f"v_lshrrev_b32 v{vT+1}, 5, v0")
    e(f"v_bfe_u32 v{vT+2}, v0, 1, 3")
    e(f"v_xor_b32 v{vT+2}, v{vT+2}, v{vT+1}")
    e(f"s_lshl_b32 s{sT0}, s{sWR}, 13")
    e(f"v_lshlrev_b32 v{vT}, 7, v{vT}")
    e(f"v_add_u32 v{vT}, s{sT0}, v{vT}")
    for t in range(4):
        e(f"v_xor_b32 v{vT+3}, {2*t}, v{vT+2}")
        e(f"v_lshl_add_u32 v{vXA+t}, v{vT+3}, 4, v{vT}")
    e(f"v_bfe_u32 v{vT}, v0, 2, 2")
    if not o.nopar:
        e(f"s_bfe_u32 s{sT0}, s{sUST}, 0x10001")
        e(f"v_xor_b32 v{vT}, s{sT0}, v{vT}")
    e(f"v_lshl_add_u32 v{vT}, v{vT+1}, 3, v{vT}")
    e(f"v_mul_u32_u24 v{vT}, 192, v{vT}")
    e(f"v_and_b32 v{vT+2}, 3, v0")
    e(f"v_lshl_add_u32 v{vT}, v{vT+2}, 3, v{vT}")
    e(f"s_mul_i32 s{sT0}, s{sWC}, 96")
    e(f"s_add_u32 s{sT0}, s{sT0}, {W1B}")
    e(f"v_add_u32 v{vT}, s{sT0}, v{vT}")
    e(f"v_bfe_u32 v{vT+2}, v0, 4, 1")
    e(f"s_cmp_eq_u32 s{sWC}, 0")
    csel(sT0, 12288+32, 12288-32)
    csel(sT1, 12288-32, 12288+32)
    e(f"v_mul_lo_u32 v{vT+3}, v{vT+2}, s{sT0}")
    e(f"v_add_u32 v{vA0}, v{vT}, v{vT+3}")
    e(f"v_mul_lo_u32 v{vT+3}, v{vT+2}, s{sT1}")
    e(f"v_add_u32 v{vA1}, v{vT}, v{vT+3}")
    e(f"v_lshlrev_b32 v{vL16}, 4, v0")
    e(f"v_bfe_u32 v{vT}, v0, 2, 2")
    e(f"v_lshl_add_u32 v{vT}, v{vT+1}, 2, v{vT}")
    e(f"v_lshlrev_b32 v{vT}, 7, v{vT}")
    e(f"v_bfe_u32 v{vT+2}, v0, 4, 1")
    e(f"v_lshl_add_u32 v{vT}, v{vT+2}, 5, v{vT}")
    e(f"v_and_b32 v{vT+2}, 3, v0")
    e(f"v_lshl_add_u32 v{vT}, v{vT+2}, 3, v{vT}")
    e(f"v_bfe_u32 v{vT+2}, v0, 3, 1")
    e(f"v_lshl_add_u32 v{vB}, v{vT+2}, 6, v{vT}")
    e(f"s_lshl_b32 s{sT0}, s{sWC}, 6")
    e(f"v_xor_b32 v{vB}, s{sT0}, v{vB}")
    e(f"v_mov_b32 v{vLANE}, v0")
    e(f"s_lshl_b32 s{sH0}, s{sMBLK}, 1")
    e(f"s_add_u32 s{sH0}, s{sH0}, s{sWR}")
    e(f"s_mul_i32 s{sEX}, s{sH0}, {o.fs1}")
    e(f"s_lshl_b32 s{sT3}, s{sSLICE}, 1")
    e(f"s_add_u32 s{sT3}, s{sT3}, s{sWC}")
    e(f"s_mul_i32 s{sT3}, s{sT3}, {o.fs2}")
    e(f"s_add_u32 s{sEX}, s{sEX}, s{sT3}")
    e(f"s_add_u32 s{sEX}, s{sEX}, {FLAGB}")
    e(f"s_mul_i32 s{sH0}, s{sH0}, {2*86}")
    e(f"s_add_u32 s{sH0}, s{sH0}, s{sUST}")
    e(f"s_mul_i32 s{sT1}, s{sWC}, 3")
    e(f"s_add_u32 s{sH0}, s{sH0}, s{sT1}")
    e(f"s_lshl_b32 s{sH0}, s{sH0}, 10")
    e(f"s_add_u32 s{sH1}, s{sH0}, {86*1024}")
    e(f"s_sub_u32 s{sNV}, s{sUCNT}, s{sT1}")
    e(f"s_mov_b32 s{sK}, 0xbfb8aa3b")
    e(f"s_mov_b32 s{sK+1}, 0xbfb8aa3b")
    e(f"s_lshl_b32 s{sHB}, s{sM64}, 1")
    e(f"s_add_u32 s{sHB}, s{sHB}, s{sWR}")
    e(f"s_mul_i32 s{sHB}, s{sHB}, 86")
    e(f"s_mul_i32 s{sT1}, s{sWC}, 43")
    e(f"s_add_u32 s{sHB}, s{sHB}, s{sT1}")
    e(f"s_lshl_b32 s{sHB}, s{sHB}, 10")
    e(f"s_lshl_b32 s{sT0}, s{sWC}, 1")
    e(f"s_sub_u32 s{sT0}, s{sT0}, s{sR4}")
    e(f"s_and_b32 s{sS0}, s{sT0}, 3")
    e(f"s_mul_i32 s{sS0}, s{sS0}, {SLOT}")
    e(f"s_add_u32 s{sT0}, s{sT0}, 1")
    e(f"s_and_b32 s{sS1}, s{sT0}, 3")
    e(f"s_mul_i32 s{sS1}, s{sS1}, {SLOT}")
    e(f"s_sub_u32 s{sS1}, s{sS1}, {4*10240}")
    e(f"s_mov_b32 s{sG}, s{sNBLK}")
    e(f"s_mul_i32 s{sHO}, s{sNBLK}, 5120")
    e(f"s_add_u32 s{sHO}, s{sHO}, s{sHB}")
    e(f"s_add_u32 s{sHE}, s{sHB}, {10*4096}")
    e("s_waitcnt lgkmcnt(0)")
    srd(SH, 16, WSB)
    srd(SOUT, 12, 2097152)
    srd(SDBG, 14, 256)
    e(f"s_or_b32 s{sT0}, s2, s{sLW}")
    e(f"s_cbranch_scc1 L_nopub")
    e("s_memrealtime s[84:85]")
    e("s_waitcnt lgkmcnt(0)")
    e("s_or_b32 s84, s84, 1")
    e("v_mov_b32 v2, s84")
    e("v_mov_b32 v3, s85")
    e("s_mov_b64 exec, 1")
    e(f"buffer_store_dwordx2 v[2:3], off, s[{SDBG}:{SDBG+3}], 0 sc1")
    e("s_mov_b64 exec, -1")
    e("s_nop 1")
    e.label("L_nopub")
    if stamps:
        e(f"v_writelane_b32 v{STV}, s90, 0")
        nst[0] = 1
    for r in range(96):
        e(f"v_mov_b32 v{ACC+r}, 0")
    AC2 = 172
    for r in range(32):
        e(f"v_mov_b32 v{AC2+r}, 0")
    e(f"s_mov_b32 s{sN}, 0")
    e(f"s_mov_b32 s{sSLOTB}, 0")

    def reads(t, st):
        f = FR[st]
        L = []
        L.append((f"x0_{st}", f"ds_read_b128 {vr(f,4)}, v{vXA+t}"))
        def w(uj):
            a = vA1 if uj == 1 else vA0
            for rd in range(2):
                L.append((f"w{uj}{rd}_{st}", f"ds_read_b64_tr_b16 {vr(f+8+4*uj+2*rd,2)}, v{a} offset:{uj*32 + (16*t+4*rd)*192}"))
        w(0)
        L.append((f"x1_{st}", f"ds_read_b128 {vr(f+4,4)}, v{vXA+t} offset:4096"))
        w(1); w(2)
        return L
    def mfma(k, st):
        uj, mi = k // 2, k % 2
        f = FR[st]
        e.need(f"x{mi}_{st}", f"w{uj}0_{st}", f"w{uj}1_{st}")
        a = ACC + 16*(mi*3+uj)
        if not o.nomfma:
            e(f"v_mfma_f32_32x32x16_bf16 {vr(a,16)}, {vr(f+8+4*uj,4)}, {vr(f+4*mi,4)}, {vr(a,16)}")

    e("s_barrier")
    stamp()
    if o.deep:
        FR[:] = [96, 116, 136, 204]
        def mf(k, st):
            uj, mi = k // 2, k % 2
            f = FR[st]
            a = ACC + 16*(mi*3+uj)
            if not o.nomfma:
                e(f"v_mfma_f32_32x32x16_bf16 {vr(a,16)}, {vr(f+8+4*uj,4)}, {vr(f+4*mi,4)}, {vr(a,16)}")
        for tag, s in reads(0, 0): e(s)
        e("s_waitcnt lgkmcnt(1)")
        for tag, s in reads(1, 1): e(s)
        state0 = []
        dist = [int(x) for x in o.dist.split(",")]
        assert sum(dist) == 8
        e.label("L_p1")
        for t in range(4):
            R = [s for tag, s in reads((t+2) & 3, (t+2) & 3)]
            e("s_waitcnt lgkmcnt(8)")
            if t == 2:
                for k in range(o.bpos): mf(k, t)
                e(f"s_add_u32 s{sSLOTB}, s{sSLOTB}, 1")
                e(f"s_and_b32 s{sSLOTB}, s{sSLOTB}, 3")
                csel(sT0, SLOT, (-3*SLOT) & 0xffffffff)
                e("s_waitcnt lgkmcnt(0)")
                e("s_barrier")
                e(f"v_add_u32 v{vXA}, s{sT0}, v{vXA}")
                e(f"v_add_u32 v{vA0}, s{sT0}, v{vA0}")
                e(f"v_add_u32 v{vA1}, s{sT0}, v{vA1}")
                rem = 6 - o.bpos
                per = [8 // rem + (1 if i < 8 % rem else 0) for i in range(rem)]
                p = 0
                for i, k in enumerate(range(o.bpos, 6)):
                    mf(k, t)
                    for s in R[p:p+per[i]]: e(s)
                    p += per[i]
                for tt in range(1, 4):
                    e(f"v_add_u32 v{vXA+tt}, s{sT0}, v{vXA+tt}")
            else:
                p = 0
                for k in range(6):
                    mf(k, t)
                    for s in R[p:p+dist[k]]: e(s)
                    p += dist[k]
                    if t == 3 and k == 4:
                        e(f"s_add_u32 s{sN}, s{sN}, 1")
                        e(f"s_cmp_lg_u32 s{sN}, {o.noncestage}")
                        e("s_cbranch_scc1 L_nonl")
                        e(f"buffer_load_dwordx2 {vr(vNC,2)}, off, s[{SDBG}:{SDBG+3}], 0 sc1")
                        e.label("L_nonl")
                        e(f"s_cmp_lt_u32 s{sN}, 8")
        e("s_cbranch_scc1 L_p1")
    else:
        for tag, s in reads(0, 0):
            e.lds(tag, s)
        state0 = list(e.pend)
        e.label("L_p1")
        for t in range(3):
            st = t & 1
            R = reads(t+1, st ^ 1)
            for k in range(6):
                mfma(k, st)
                for tag, s in R[2*k:2*k+2]:
                    e.lds(tag, s)
        e.drain()
        mfma(0, 1); mfma(1, 1)
        e(f"s_add_u32 s{sSLOTB}, s{sSLOTB}, 1")
        e(f"s_and_b32 s{sSLOTB}, s{sSLOTB}, 3")
        csel(sT0, SLOT, (-3*SLOT) & 0xffffffff)
        e("s_barrier")
        e(f"v_add_u32 v{vXA}, s{sT0}, v{vXA}")
        e(f"v_add_u32 v{vA0}, s{sT0}, v{vA0}")
        e(f"v_add_u32 v{vA1}, s{sT0}, v{vA1}")
        R = reads(0, 0)
        for tag, s in R[0:3]:
            e.lds(tag, s)
        mfma(2, 1)
        for tag, s in R[3:6]:
            e.lds(tag, s)
        mfma(3, 1)
        for tag, s in R[6:8]:
            e.lds(tag, s)
        for t in range(1, 4):
            e(f"v_add_u32 v{vXA+t}, s{sT0}, v{vXA+t}")
        mfma(4, 1)
        e(f"s_add_u32 s{sN}, s{sN}, 1")
        e(f"s_cmp_lg_u32 s{sN}, {o.noncestage}")
        e("s_cbranch_scc1 L_nonl")
        e(f"buffer_load_dwordx2 {vr(vNC,2)}, off, s[{SDBG}:{SDBG+3}], 0 sc1")
        e.label("L_nonl")
        e(f"s_cmp_lt_u32 s{sN}, 8")
        mfma(5, 1)
        e("s_cbranch_scc1 L_p1")
    assert e.pend == state0, (e.pend, state0)
    e.drain()
    stamp()
    e(f"s_mov_b32 s{sN}, 0")
    e.label("L_nonce")
    e("s_waitcnt vmcnt(0)")
    e(f"v_readfirstlane_b32 s{sT0}, v{vNC}")
    e(f"s_add_u32 s{sN}, s{sN}, 1")
    e(f"s_cmp_lg_u32 s{sT0}, 0")
    e("s_cbranch_scc1 L_nonce_ok")
    e(f"s_cmp_ge_u32 s{sN}, 0x200000")
    e("s_cbranch_scc1 L_nonce_ok")
    e(f"buffer_load_dwordx2 {vr(vNC,2)}, off, s[{SDBG}:{SDBG+3}], 0 sc1")
    e("s_branch L_nonce")
    e.label("L_nonce_ok")
    e("s_nop 7")
    T = 96
    held = []
    ntile = 0
    for uj in range(3):
        if uj == 1:
            e(f"s_cmp_lt_u32 s{sNV}, 2")
            e("s_cbranch_scc1 L_epi_short")
            held0 = list(held)
        for mi in range(2):
            a = ACC + 16*(mi*3+uj)
            tt = T + 8*mi
            for r in range(0, 8, 2):
                e(f"v_pk_mul_f32 {vr(tt+r,2)}, {vr(a+r,2)}, s[{sK}:{sK+1}]")
            for r in range(8):
                e(f"v_exp_f32 v{tt+r}, v{tt+r}")
            for r in range(0, 8, 2):
                e(f"v_pk_mul_f32 {vr(a+r,2)}, {vr(a+r,2)}, {vr(a+8+r,2)}")
            for r in range(0, 8, 2):
                e(f"v_pk_add_f32 {vr(tt+r,2)}, {vr(tt+r,2)}, 1.0 op_sel_hi:[1,0]")
            for r in range(8):
                e(f"v_rcp_f32 v{tt+r}, v{tt+r}")
            e("s_nop 0")
            for r in range(0, 8, 2):
                e(f"v_pk_mul_f32 {vr(a+r,2)}, {vr(a+r,2)}, {vr(tt+r,2)}")
            for r in range(4):
                e(f"v_cvt_pk_bf16_f32 v{a+8+r}, v{a+2*r}, v{a+2*r+1}")
            so = sH0 if mi == 0 else sH1
            held.append(f"buffer_store_dwordx4 {vr(a+8,4)}, v{vL16}, s[{SH}:{SH+3}], s{so} offen offset:{1024*uj} sc1")
            ntile += 1
            if ntile >= o.hold:
                for s in held: e(s)
                held = []
    if held0:
        e("s_branch L_epi_done")
        e.label("L_epi_short")
        for s in held0: e(s)
    else:
        e.label("L_epi_short")
    e.label("L_epi_done")
    e("s_barrier")
    stamp()
    HR = 0
    WB = 204
    NB = 4
    vBA = [[240, 241], [242, 243]]
    vBF = [244, 245]
    vL16b = 248
    vEW, vER = 249, 250
    e(f"v_add_u32 v{vL16b}, 4096, v{vL16}")
    def setaddr(dst):
        e(f"s_cmp_lt_u32 s{sG}, 4")
        e(f"s_cselect_b32 s{sT0}, s{sS0}, s{sS1}")
        e(f"s_mul_i32 s{sT1}, s{sG}, 10240")
        e(f"s_add_u32 s{sT0}, s{sT0}, s{sT1}")
        e(f"v_add_u32 v{dst[0]}, s{sT0}, v{vB}")
        e(f"s_add_u32 s{sG}, s{sG}, 1")
        e(f"s_and_b32 s{sG}, s{sG}, 7")
        e(f"v_xor_b32 v{dst[1]}, 64, v{dst[0]}")
    setaddr(vBA[0])
    e(f"v_mov_b32 v{vBF[0]}, v{vBA[0][0]}")
    e(f"v_mov_b32 v{vBF[1]}, v{vBA[0][1]}")
    setaddr(vBA[1])
    e(f"s_lshl_b32 s{sT1}, s{sWR}, 12")
    e(f"s_add_u32 s{sT0}, s{sT0}, s{sT1}")
    e(f"v_add_u32 v{vEW}, s{sT0}, v{vL16}")
    e(f"s_add_u32 s{sT0}, s{sT0}, {2*SLOT}")
    e(f"s_cmp_ge_u32 s{sT0}, {4*SLOT}")
    e(f"s_cselect_b32 s{sT1}, {4*SLOT}, 0")
    e(f"s_sub_u32 s{sT0}, s{sT0}, s{sT1}")
    e(f"v_add_u32 v{vER}, s{sT0}, v{vL16}")
    e("s_mov_b64 exec, 1")
    e("s_waitcnt vmcnt(0)")
    e(f"buffer_store_dwordx2 {vr(vNC,2)}, off, s[{SH}:{SH+3}], s{sEX} sc1")
    stamp()
    e("s_mov_b64 exec, -1")
    e("s_barrier")
    stamp()
    def w2reads(uu):
        b = WB + 8*(uu % NB)
        g, k = uu // 5, uu % 5
        A = vBA[g & 1] if g < 8 else vBF
        L = []
        for dj in (1, 0):
            for rd in range(2):
                L.append((f"u{uu}_{dj}{rd}", f"ds_read_b64_tr_b16 {vr(b+4*dj+2*rd,2)}, v{A[dj]} offset:{k*2048+1024*rd}"))
        return L
    def hload(uu):
        so = sHO if uu < 40 else sHE
        k = uu % 5
        va, off = (vL16, 1024*k) if k < 4 else (vL16b, 0)
        e(f"buffer_load_dwordx4 {vr(HR+4*uu,4)}, v{va}, s[{SH}:{SH+3}], s{so} offen offset:{off} sc1")
        if k == 4 and uu < 39:
            e(f"s_add_u32 s{sHO}, s{sHO}, 5120")
            e(f"s_cmp_eq_u32 s{sHO}, s{sHE}")
            e(f"s_cselect_b32 s{sHO}, s{sHB}, s{sHO}")
    PD = o.pd
    order = [0, 1, 2, 3, 4, 40, 41, 42] + list(range(5, 40))
    pos = {u: i for i, u in enumerate(order)}
    issued = 0
    for i in range(PD):
        hload(order[i]); issued += 1
    for uu in range(3):
        for tag, s in w2reads(uu):
            e.lds(tag, s)
    e.drain()
    e("s_barrier")
    stamp()
    for uu in range(43):
        R = w2reads(uu+3) if uu + 3 < 43 else []
        b = WB + 8*(uu % NB)
        if uu < 40:
            assert pos[uu] < issued
            e(f"s_waitcnt vmcnt({issued - pos[uu] - 1})")
        for q, dj in enumerate((1, 0)):
            e.need(f"u{uu}_{dj}0", f"u{uu}_{dj}1")
            a = AC2 + 16*dj
            e(f"v_mfma_f32_32x32x16_bf16 {vr(a,16)}, {vr(b+4*dj,4)}, {vr(HR+4*uu,4)}, {vr(a,16)}")
            for tag, s in R[2*q:2*q+2]:
                e.lds(tag, s)
        if issued < 43:
            hload(order[issued]); issued += 1
        if uu == o.dpos:
            e("s_barrier")
        if uu % 5 == 1 and uu // 5 + 2 < 8:
            setaddr(vBA[(uu // 5) & 1])
        if uu == 36:
            e(f"v_and_b32 v2, 31, v{vLANE}")
            e(f"v_lshrrev_b32 v3, 5, v{vLANE}")
            e(f"v_lshlrev_b32 v2, 10, v2")
            e(f"v_lshl_add_u32 v2, v3, 4, v2")
            e(f"s_lshl_b32 s{sT0}, s{sM64}, 1")
            e(f"s_add_u32 s{sT0}, s{sT0}, s{sWR}")
            e(f"s_lshl_b32 s{sT0}, s{sT0}, 15")
            e(f"s_lshl_b32 s{sT1}, s{sNBLK}, 7")
            e(f"s_add_u32 s{sT0}, s{sT0}, s{sT1}")
            e(f"s_lshl_b32 s{sT1}, s{sWC}, 6")
            e(f"s_add_u32 s{sT0}, s{sT0}, s{sT1}")
    stamp()
    e("s_nop 10")
    for j in range(4):
        e(f"ds_write_b128 v{vEW}, {vr(AC2+16+4*j,4)} offset:{1024*j}")
    e("s_waitcnt lgkmcnt(0)")
    e("s_barrier")
    for j in range(4):
        e(f"ds_read_b128 {vr(32+4*j,4)}, v{vER} offset:{1024*j}")
    for j in range(4):
        e(f"s_waitcnt lgkmcnt({3-j})")
        for r in range(4*j, 4*j+4, 2):
            e(f"v_pk_add_f32 {vr(AC2+r,2)}, {vr(AC2+r,2)}, {vr(32+r,2)}")
        for r in range(2*j, 2*j+2):
            e(f"v_cvt_pk_bf16_f32 v{48+r}, v{AC2+2*r}, v{AC2+2*r+1}")
        if j & 1:
            e("s_nop 1")
            e(f"v_permlane32_swap_b32 v{46+2*j}, v{48+2*j}")
            e(f"v_permlane32_swap_b32 v{47+2*j}, v{49+2*j}")
            e(f"buffer_store_dwordx4 {vr(46+2*j,4)}, v2, s[{SOUT}:{SOUT+3}], s{sT0} offen offset:{16*(j-1)}")
    e.label("L_cfin")
    if stamps:
        stamp()
        e("s_waitcnt vmcnt(0)")
        stamp()
        e(f"s_cmp_lg_u32 s{sLW}, 0")
        e("s_cbranch_scc1 L_end")
        stamp_out(0x800000)
    e.label("L_end")
    e("s_endpgm")

    head = f"""; Fused SwiGLU MLP: out = (silu(x@w1) * (x@w3)) @ w2   (bf16, M=2048 D=512 F=1376)
; @launch grid=(256,1,1) block=(512,1,1) lds=163840
.amdgcn_target "amdgcn-amd-amdhsa--gfx950"
.text
.globl {NAME}_kernel
.p2align 8
.type {NAME}_kernel,@function
{NAME}_kernel:
"""
    tail = f""".section .rodata,"a"
.p2align 6
.amdhsa_kernel {NAME}_kernel
  .amdhsa_next_free_vgpr 256
  .amdhsa_next_free_sgpr 102
  .amdhsa_accum_offset 256
  .amdhsa_group_segment_fixed_size 0
  .amdhsa_kernarg_size 56
  .amdhsa_user_sgpr_count 2
  .amdhsa_user_sgpr_kernarg_segment_ptr 1
  .amdhsa_system_sgpr_workgroup_id_x 1
.end_amdhsa_kernel
"""
    return head + e.text() + tail

DEF = "S0 S1 R0 R1 B0 S2 S3 R2a B1 R2b R3 B2 S4 S5 R4a B3 R4b R5 B4 S6 S7 R6a B5 R6b R7 N B6 W0 B7 Fa B8"

if __name__ == "__main__":
    ap = argparse.ArgumentParser()
    ap.add_argument("-o", default="/dev/stdout")
    for f in ("stamps", "nomfma", "ldfirst", "nols", "deep", "nopar", "nobal"):
        ap.add_argument("--" + f, action="store_true")
    ap.add_argument("--fs1", type=int, default=4096)
    ap.add_argument("--fs2", type=int, default=8)
    ap.add_argument("--pd", type=int, default=12)
    ap.add_argument("--hold", type=int, default=1)
    ap.add_argument("--noload", type=int, default=0)
    ap.add_argument("--bpos", type=int, default=2)
    ap.add_argument("--dist", default="2,2,2,2,0,0")
    ap.add_argument("--lprio", type=int, default=0)
    ap.add_argument("--dpos", type=int, default=20)
    ap.add_argument("--stampw", type=int, default=0)
    ap.add_argument("--noncestage", type=int, default=4)
    ap.add_argument("--sched", default=DEF)
    ap.add_argument("--tail", default="J Fb A W1 W2 W3")
    a = ap.parse_args()
    open(a.o, "w").write(gen(a))
```

```python
import sys, argparse, re

NAME = "standalone__glu_gated_swiglu__prompt"

class E:
    def __init__(self):
        self.lines = []
        self.pend = []
        self.uid = 0
    def __call__(self, s):
        self.lines.append("    " + s)
    def label(self, l):
        self.lines.append(l + ":")
    def new(self, p="L"):
        self.uid += 1
        return f"{p}_{self.uid}"
    def lds(self, tag, s):
        self.pend.append(tag)
        assert len(self.pend) <= 15, "lgkm overflow"
        self(s)
    def need(self, *tags):
        idx = -1
        for t in tags:
            if t in self.pend:
                idx = max(idx, self.pend.index(t))
        if idx >= 0:
            n = len(self.pend) - 1 - idx
            self(f"s_waitcnt lgkmcnt({n})")
            self.pend = self.pend[idx+1:]
    def drain(self):
        self("s_waitcnt lgkmcnt(0)")
        self.pend = []
    def text(self):
        return "\n".join(self.lines) + "\n"

def vr(a, n):
    return f"v[{a}:{a+n-1}]"

SLOT = 40960
W1B = 16384
FLAGB = 0x600000
WROW = 2752
FL = 2*SLOT - 64
SPIN = 0x100000
NOV, NC1, NC2 = 4, 19, 20
W2P = {0: (16*NOV, 16*NC1, SLOT, 6),
       1: (688 + 16*NOV, 16*NC1, 2*SLOT, 7),
       2: (16*(NOV+NC1), 16*NC2, 3*SLOT, 8),
       3: (688 + 16*(NOV+NC1), 16*NC2, 0, 8)}

def gen(o):
    e = E()
    stamps = o.stamps
    SX, SW1, SW3, SW2, SOUT, SDBG, SH = 20, 24, 28, 32, 36, 40, 44
    sWAVE, sXCD, sJJ, sHALF, sSLICE, sMBLK, sUST, sUCNT, sM128, sM64, sNBLK = range(50, 61)
    sT0, sT1, sT2, sT3, sN, sR4, sLW, sCNT = range(61, 69)
    ROT = 20
    sROT = "0" if o.norot else f"s{sHALF}"
    WSB = 0x10000000 if stamps else (FLAGB + 32*o.fs1)
    STV = 252
    nst = [0]
    def stamp():
        if stamps:
            n = nst[0]
            assert n < 31
            e("s_memrealtime s[94:95]")
            e("s_memtime s[92:93]")
            e("s_waitcnt lgkmcnt(0)")
            e.pend = []
            e("s_sub_u32 s92, s92, s98")
            e(f"v_writelane_b32 v{STV}, s94, {n}")
            e(f"v_writelane_b32 v{STV}, s92, {32+n}")
            nst[0] += 1
    def stamp_out(base):
        e("s_mov_b64 exec, -1")
        e(f"s_lshl_b32 s{sT0}, s2, 8")
        e(f"s_add_u32 s{sT0}, s{sT0}, {base}")
        e("v_mbcnt_lo_u32_b32 v5, -1, 0")
        e("v_mbcnt_hi_u32_b32 v5, -1, v5")
        e("v_lshlrev_b32 v5, 2, v5")
        e(f"buffer_store_dword v{STV}, v5, s[{SH}:{SH+3}], s{sT0} offen")
    def csel(dst, a, b):
        e(f"s_mov_b32 s{dst}, {b}")
        e(f"s_cmov_b32 s{dst}, {a}")
    def srd(base, ptr, nbytes):
        e(f"s_mov_b32 s{base}, s{ptr}")
        e(f"s_and_b32 s{base+1}, s{ptr+1}, 0xffff")
        e(f"s_mov_b32 s{base+2}, {nbytes}")
        e(f"s_mov_b32 s{base+3}, 0x20000")
    vFL, vMY, vF, vSG = 232, 233, 228, 234
    def min4(dst_s):
        e(f"v_min3_u32 v{vF}, v{vF}, v{vF+1}, v{vF+2}")
        e(f"v_min_u32 v{vF}, v{vF}, v{vF+3}")
        e("s_nop 0")
        e(f"v_readfirstlane_b32 s{dst_s}, v{vF}")
    def spin4(off, target, sleep=1):
        l, d = e.new("L_spin"), e.new("L_spun")
        e(f"s_mov_b32 s{sCNT}, 0")
        e.label(l)
        e(f"ds_read_b128 {vr(vF,4)}, v{vFL} offset:{off}")
        e(f"s_add_u32 s{sCNT}, s{sCNT}, 1")
        e("s_waitcnt lgkmcnt(0)")
        min4(sT3)
        e(f"s_cmp_ge_u32 s{sT3}, {target}")
        e(f"s_cbranch_scc1 {d}")
        if sleep: e(f"s_sleep {sleep}")
        e(f"s_cmp_lt_u32 s{sCNT}, {SPIN}")
        e(f"s_cbranch_scc1 {l}")
        e.label(d)
    def signal(val):
        e(f"v_mov_b32 v{vSG}, {val}")
        e("s_mov_b64 exec, 1")
        e(f"ds_write_b32 v{vMY}, v{vSG}")
        e("s_mov_b64 exec, -1")

    e("s_cmp_ge_u32 s2, 256")
    e("s_cbranch_scc1 L_end")
    e("s_load_dwordx8 s[4:11], s[0:1], 0")
    e("s_load_dwordx4 s[12:15], s[0:1], 32")
    e("s_load_dwordx2 s[16:17], s[0:1], 48")
    if stamps:
        e("s_memtime s[98:99]")
        e("s_memrealtime s[90:91]")
        e(f"v_mov_b32 v{STV}, 0")
    e("v_lshrrev_b32 v1, 6, v0")
    e("v_and_b32 v0, 63, v0")
    e(f"v_mov_b32 v{vFL}, {FL}")
    e(f"v_readfirstlane_b32 s{sWAVE}, v1")
    e(f"v_xor_b32 v1, 4, v1")
    e(f"v_lshl_add_u32 v{vMY}, v1, 2, v{vFL}")
    e(f"s_and_b32 s{sXCD}, s2, 7")
    e(f"s_lshr_b32 s{sJJ}, s2, 3")
    e(f"s_lshr_b32 s{sHALF}, s{sJJ}, 4")
    e(f"s_and_b32 s{sJJ}, s{sJJ}, 15")
    e(f"s_and_b32 s{sT0}, s{sXCD}, 3")
    e(f"s_lshr_b32 s{sT1}, s2, 6")
    e(f"s_add_u32 s{sT1}, s{sT1}, s{sJJ}")
    e(f"s_and_b32 s{sT1}, s{sT1}, 3")
    e(f"s_lshl_b32 s{sSLICE}, s{sT0}, 2")
    e(f"s_add_u32 s{sSLICE}, s{sSLICE}, s{sT1}")
    e(f"s_mul_i32 s{sUST}, s{sT0}, 22")
    e(f"s_mul_i32 s{sT2}, s{sT1}, 6")
    e(f"s_add_u32 s{sUST}, s{sUST}, s{sT2}")
    e(f"s_cmp_eq_u32 s{sSLICE}, 15")
    e(f"s_cselect_b32 s{sT2}, 2, 0")
    e(f"s_sub_u32 s{sUST}, s{sUST}, s{sT2}")
    e(f"s_cmp_eq_u32 s{sT1}, 3")
    e(f"s_cselect_b32 s{sUCNT}, 4, 6")
    e(f"s_cmp_eq_u32 s{sSLICE}, 14")
    e(f"s_cselect_b32 s{sUCNT}, 4, s{sUCNT}")
    e(f"s_lshl_b32 s{sMBLK}, s{sHALF}, 3")
    e(f"s_and_b32 s{sT0}, s{sXCD}, 4")
    e(f"s_add_u32 s{sMBLK}, s{sMBLK}, s{sT0}")
    e(f"s_lshr_b32 s{sT0}, s{sJJ}, 2")
    e(f"s_add_u32 s{sMBLK}, s{sMBLK}, s{sT0}")
    def p2ids():
        e(f"s_lshl_b32 s{sM128}, s{sHALF}, 3")
        e(f"s_add_u32 s{sM128}, s{sM128}, s{sXCD}")
        e(f"s_lshl_b32 s{sM64}, s{sM128}, 1")
        e(f"s_lshr_b32 s{sT2}, s{sJJ}, 3")
        e(f"s_add_u32 s{sM64}, s{sM64}, s{sT2}")
        e(f"s_and_b32 s{sNBLK}, s{sJJ}, 7")
        e(f"s_mov_b32 s{sR4}, {'0' if o.norot or o.nora else 's%d' % sT2}")
    e(f"s_and_b32 s{sLW}, s{sWAVE}, 3")
    e(f"s_cmp_ge_u32 s{sWAVE}, 4")
    e("s_cbranch_scc0 L_compute")

    sO, sLA, sLB, sW2O, sW2L, sSO, sPRE = 69, 73, 77, 81, 91, 86, 87
    vP = 8
    vX = 10; vWA, vWB = 10, 11
    vW2 = 20
    vSTG = 64
    vYS = 180
    if o.lprio: e(f"s_setprio {o.lprio}")
    e("v_lshrrev_b32 v2, 3, v0")
    e("v_and_b32 v3, 7, v0")
    e("v_lshrrev_b32 v4, 4, v0")
    e(f"s_cmp_eq_u32 s{sLW}, 3")
    e("s_cbranch_scc1 L_xload")

    KROWS = o.krows
    kfirst, kcount = [int(x) for x in KROWS.split(",")]
    kper_wg = (kcount * 8 + 31) // 32
    def kbase(first, per):
        e(f"s_lshr_b32 s88, s2, 3")
        e(f"s_mul_i32 s88, s88, {kper_wg}")
        e(f"s_mul_i32 s89, s{sLW}, {per}")
        e(f"s_add_u32 s88, s88, s89")
        e(f"s_add_u32 s88, s88, {first + kfirst*8}")
        e(f"s_min_u32 s88, s88, {11008 - per}")
        e(f"s_lshl_b32 s88, s88, 7")
        e(f"s_add_u32 s88, s10, s88")
        e(f"s_addc_u32 s89, s11, 0")
    kper = max(0, (kper_wg - 4*o.kc + 3) // 4)
    scheds = [x.split() for x in o.sched.split("|")]
    tailtok = o.tail.split()
    assert tailtok[0] == "J"
    def programs(kind):
        ng = len(scheds)
        if ng > 1:
            e(f"s_lshr_b32 s{sCNT}, s2, 5")
            e(f"s_add_u32 s{sCNT}, s{sCNT}, s{sSLICE}")
            e(f"s_and_b32 s{sCNT}, s{sCNT}, 1")
            e(f"s_cbranch_scc1 L_{kind}1")
        for g in range(ng):
            e.label(f"L_{kind}{g}")
            program(kind, scheds[g] + tailtok, kind == "x" and g == ng - 1)

    def program(kind, sched, last):
        ops = []
        st = dict(cons=0, dsw=False, w2=False, nstamp=1, done=-1, thr=0, k=0, sig=8, pre=0, bar=-1)
        staged = {}
        issued = {}
        nblk = 4 if kind == "x" else 8
        nshare = 4 if kind == "x" else 1
        def lst():
            if stamps and not o.nols:
                nst[0] = st["nstamp"]; stamp(); st["nstamp"] = nst[0]
        def vmem(tag, s):
            if st["thr"]: e(f"s_waitcnt vmcnt({st['thr']})")
            if o.noload and tag[0] == "st" and o.noload <= tag[1] < 8: return
            ops.append(tag); e(s)
        def wait_for(pred, commit=True):
            idx = max([i for i, t in enumerate(ops) if pred(t)], default=-1)
            if idx <= st["done"]:
                return
            n = min(63, len(ops) - 1 - idx)
            if commit: st["done"] = len(ops) - 1 - n
            e(f"s_waitcnt vmcnt({n})")
        def complete(lv):
            need = nblk if lv < 8 else 2
            if lv == o.ovstage: need += 1
            return issued.get(lv, 0) == need
        def land(lv, commit=True):
            assert complete(lv), f"level {lv} incomplete: {issued}"
            wait_for(lambda t: t == ("st", lv), commit)
            if st["dsw"]:
                e("s_waitcnt lgkmcnt(0)")
                if commit: st["dsw"] = False
            if not (o.nolsig and 0 < lv < 7): signal(lv + 1)
        def need_cons(c):
            if c <= st["cons"] or (o.nosig and c < 9): return
            ok = e.new("L_free")
            if st["pre"]:
                if st["pre"] == 1:
                    e("s_waitcnt lgkmcnt(0)")
                    st["dsw"] = False
                    min4(sPRE)
                    st["pre"] = 2
                e(f"s_cmp_ge_u32 s{sPRE}, {c}")
                e(f"s_cbranch_scc1 {ok}")
            if not st["pre"] or o.recheck:
                e(f"ds_read_b128 {vr(vF,4)}, v{vFL} offset:16")
                e("s_waitcnt lgkmcnt(0)")
                if not st["pre"]: st["dsw"] = False
                min4(sT3)
                e(f"s_cmp_ge_u32 s{sT3}, {c}")
                e(f"s_cbranch_scc1 {ok}")
            lv = st["sig"]
            while complete(lv):
                land(lv, commit=False); lv += 1
            assert lv >= min(c, 8), f"deadlock: waiting for consumed>={c} with only {lv} levels signalled"
            spin4(16, c, sleep=o.lsleep)
            e.label(ok)
            st["cons"] = c
            lastso[0] = None
        def xblock(n, j, regs=None):
            assert regs is not None or n <= 3 or st["bar"] >= n - 3
            e(f"s_add_u32 s{sSO}, s{sO+j}, {128*n}")
            if regs is None:
                e(f"s_add_u32 m0, s{sLA+j}, {(n%4)*SLOT}")
                e("s_nop 0")
                for i in range(4):
                    vmem(("st", n), f"buffer_load_dwordx4 v{vX+i}, s[{SX}:{SX+3}], s{sSO} offen offset:{1024*i} lds")
                issued[n] = issued.get(n, 0) + 1
            else:
                for i in range(4):
                    vmem(("rg", n), f"buffer_load_dwordx4 {vr(regs+4*i,4)}, v{vX+i}, s[{SX}:{SX+3}], s{sSO} offen offset:{1024*i}")
        lastso = [None]
        def wblock(n, j, regs=None):
            assert regs is not None or n <= 3 or st["bar"] >= n - 3
            k, b = j >> 1, j & 1
            S = SW3 if b else SW1
            v = vWB if b else vWA
            if regs is None:
                e(f"s_add_u32 m0, s{(sLB if b else sLA)+k}, {(n%4)*SLOT}")
            if lastso[0] != (n, k):
                e(f"s_add_u32 s{sSO}, s{sO+k}, {64*WROW*n}")
                lastso[0] = (n, k)
            elif regs is None:
                e("s_nop 0")
            if regs is None:
                vmem(("st", n), f"buffer_load_dwordx4 v{v}, s[{S}:{S+3}], s{sSO} offen lds")
                issued[n] = issued.get(n, 0) + 1
            else:
                vmem(("rg", n), f"buffer_load_dwordx4 {vr(regs,4)}, v{v}, s[{S}:{S+3}], s{sSO} offen")
        block = xblock if kind == "x" else wblock
        def put(n):
            assert st["bar"] >= n - 3
            wait_for(lambda t: t == ("rg", n))
            r = staged.pop(n)
            va = vP + (n % 4 >> 1)
            for i in range(nshare):
                e(f"ds_write_b128 v{va}, {vr(r+4*i,4)} offset:{(n%2)*SLOT + 1024*i}")
            st["dsw"] = True
            issued[n] = issued.get(n, 0) + 1
        def w2setup():
            if st["w2"]: return
            st["w2"] = True
            lastso[0] = None
            p2ids()
            e("v_and_b32 v5, 1, v4")
            e("v_lshlrev_b32 v5, 2, v5")
            e("v_xor_b32 v5, v5, v3")
            e("v_lshlrev_b32 v5, 4, v5")
            e("v_lshl_add_u32 v5, v2, 10, v5")
            e(f"s_lshl_b32 s{sT0}, s{sNBLK}, 7")
            e(f"v_add_u32 v{vW2}, s{sT0}, v5")
            srd(SW2, 10, 1409024)
            srd(SDBG, 14, 256)
            srd(SH, 16, WSB)
            e(f"s_lshl_b32 s{sT0}, s{sLW}, 13")
            e(f"s_mul_i32 s{sT1}, {sROT}, {ROT*16*1024}")
            e(f"s_add_u32 s{sW2O+4}, s{sT0}, s{sT1}")
            e(f"s_mul_i32 s{sT2}, s{sR4}, {688*1024}")
            e(f"s_sub_u32 s{sT3}, {688*1024}, s{sT2}")
            e(f"s_add_u32 s{sT1}, s{sW2O+4}, {NOV*16*1024}")
            e(f"s_add_u32 s{sW2O}, s{sT1}, s{sT2}")
            e(f"s_add_u32 s{sW2O+1}, s{sT1}, s{sT3}")
            e(f"s_cmp_eq_u32 {sROT}, 0")
            e(f"s_cselect_b32 s{sT1}, {(NOV+NC1)*16*1024}, 0")
            e(f"s_add_u32 s{sT1}, s{sT1}, s{sT0}")
            e(f"s_add_u32 s{sW2O+2}, s{sT1}, s{sT2}")
            e(f"s_add_u32 s{sW2O+3}, s{sT1}, s{sT3}")
            e(f"s_lshl_b32 s{sW2L}, s{sLW}, 10")
        def w2(c, part):
            w2setup()
            lastso[0] = None
            row0, rows, base, lvl = W2P[c]
            assert st["bar"] >= lvl
            npc = rows // 8
            qs = list(range((npc + 3) // 4))
            if part == "a": qs = qs[:5]
            if part == "b": qs = qs[5:]
            lv = 8 if c < 2 else 9
            for q in qs:
                skip = None
                if 4*q + 3 >= npc:
                    e(f"s_cmp_lt_u32 s{sLW}, {npc - 4*q}")
                    e(f"s_cselect_b32 s{sT0}, 0, {4096}")
                    e(f"s_add_u32 m0, s{sW2L}, {base + 4096*q}")
                    e(f"s_sub_u32 m0, m0, s{sT0}")
                    e(f"s_lshl_b32 s{sT0}, s{sT0}, 3")
                    e(f"s_add_u32 s{sSO}, s{sW2O+c}, {32*q*1024}")
                    e(f"s_sub_u32 s{sSO}, s{sSO}, s{sT0}")
                else:
                    e(f"s_add_u32 m0, s{sW2L}, {base + 4096*q}")
                    e(f"s_add_u32 s{sSO}, s{sW2O+c}, {32*q*1024}")
                vmem(("st", lv), f"buffer_load_dwordx4 v{vW2}, s[{SW2}:{SW2+3}], s{sSO} offen lds")
            if part != "a":
                issued[lv] = issued.get(lv, 0) + 1
        for tok in sched:
            m = re.fullmatch(r"([A-Z])(\d*)([abcd]?)", tok)
            t, n, h = m.group(1), int(m.group(2)) if m.group(2) else None, m.group(3)
            if t == "V":
                e(f"s_waitcnt vmcnt({n})")
            elif t == "H":
                st["thr"] = n * (2 if kind == "x" and h == "a" else 1)
            elif t == "K":
                if st["k"] == 0:
                    kbase(4*o.kc, kper)
                for i in range(n):
                    if st["k"] < kper:
                        e(f"s_load_dwordx2 s[100:101], s[88:89], {128*st['k'] + 60}")
                        st["k"] += 1
            elif t == "S":
                block(n, 0)
            elif t == "G":
                r = vSTG + 16*n
                staged[n] = r
                block(n, 0, r)
            elif t in "RDTU":
                js = {"R": list(range(1, nblk)), "D": [0, 1], "T": list(range(2, nblk)), "U": list(range(nblk))}[t]
                half = (len(js) + 1) // 2
                if h == "a": js = js[:half]
                if h == "b": js = js[half:]
                for j in js:
                    block(n, j)
            elif t == "P":
                put(n)
            elif t == "L":
                assert st["sig"] == n
                land(n)
                lst()
                st["sig"] = n + 1
            elif t == "Q" and o.nolsig:
                pass
            elif t == "Q":
                e(f"ds_read_b128 {vr(vF,4)}, v{vFL} offset:16")
                st["pre"] = 1
            elif t == "B":
                assert st["bar"] == n - 1
                if n <= 7:
                    assert complete(n), (n, issued)
                    wait_for(lambda t: t == ("st", n))
                if st["dsw"]:
                    e("s_waitcnt lgkmcnt(0)"); st["dsw"] = False
                lst()
                e("s_barrier")
                lst()
                st["bar"] = n
            elif t == "C":
                need_cons(n)
            elif t == "W":
                w2(n, h)
            elif t == "O":
                w2setup()
                lastso[0] = None
                for q in range(4):
                    assert st["bar"] >= 5
                    e(f"s_add_u32 m0, s{sW2L}, {4096*q}")
                    e(f"s_add_u32 s{sSO}, s{sW2O+4}, {((q >> 1)*688 + (q & 1)*32)*1024}")
                    vmem(("st", o.ovstage), f"buffer_load_dwordx4 v{vW2}, s[{SW2}:{SW2+3}], s{sSO} offen lds")
                issued[o.ovstage] = issued.get(o.ovstage, 0) + 1
            elif t == "M":
                if kind == "x":
                    per = (43 + o.mparts - 1) // o.mparts
                    if not st.get("m"):
                        st["m"] = True
                        srd(SW2, 10, 1409024)
                        e(f"v_lshlrev_b32 v30, 7, v0")
                        e(f"s_mul_i32 s{sPRE}, s2, {43*128}")
                    e(f"s_add_u32 s{sSO}, s{sPRE}, {n*per*128}")
                    e(f"s_mov_b64 exec, {(1 << per) - 1}" if per <= 32 else f"s_mov_b32 exec_hi, {(1 << (per - 32)) - 1}")
                    vmem(("m",), f"buffer_load_dword v31, v30, s[{SW2}:{SW2+3}], s{sSO} offen")
                    e("s_mov_b64 exec, -1")
            elif t == "Y":
                w2setup()
                lastso[0] = None
                ysp = [int(x) for x in o.ysplit.split(",")]
                q0 = sum(ysp[:n])
                for q in range(q0, q0 + ysp[n]):
                    e(f"s_add_u32 s{sSO}, s{sW2O+2}, {32*q*1024}")
                    vmem(("y",), f"buffer_load_dwordx4 {vr(vYS+4*q,4)}, v{vW2}, s[{SW2}:{SW2+3}], s{sSO} offen")
                    st.setdefault("y", []).append(q)
            elif t == "E":
                w2setup()
                lastso[0] = None
                if kind == "w":
                    e(f"s_mul_i32 s{sT0}, s{sR4}, 688")
                    e(f"s_mul_i32 s{sT1}, s{sHALF}, 24")
                    e(f"s_add_u32 s{sT0}, s{sT0}, s{sT1}")
                    e(f"s_lshl_b32 s{sT1}, s{sLW}, 3")
                    e(f"s_add_u32 s{sT0}, s{sT0}, s{sT1}")
                    e(f"s_add_u32 s{sT0}, s{sT0}, 320")
                    e(f"s_lshl_b32 s{sSO}, s{sT0}, 10")
                    vmem(("e",), f"buffer_load_dwordx4 v[32:35], v{vW2}, s[{SW2}:{SW2+3}], s{sSO} offen")
            elif t == "X":
                assert st["bar"] >= 8
                wait_for(lambda t: t == ("y",))
                base = W2P[2][2]
                e(f"v_lshlrev_b32 v6, 4, v0")
                e(f"s_add_u32 s{sT0}, s{sW2L}, {base}")
                e(f"v_add_u32 v6, s{sT0}, v6")
                for q in ylist:
                    e(f"ds_write_b128 v6, {vr(vYS+4*q,4)} offset:{4096*q}")
                st["dsw"] = True
                for q in range(10):
                    if q not in ylist:
                        e(f"s_add_u32 m0, s{sW2L}, {base + 4096*q}")
                        e(f"s_add_u32 s{sSO}, s{sW2O+2}, {32*q*1024}")
                        vmem(("st", 9), f"buffer_load_dwordx4 v{vW2}, s[{SW2}:{SW2+3}], s{sSO} offen lds")
                issued[9] = issued.get(9, 0) + 1
            elif t == "N":
                w2setup()
                vmem(("nonce",), f"buffer_load_dwordx2 v[28:29], off, s[{SDBG}:{SDBG+3}], 0 sc1")
            elif t == "Z":
                poll()
            elif t == "J":
                assert not staged and st["bar"] >= 7 and not st["dsw"], st
                ylist[:] = st.get("y", [])
                if st["k"]: print("prefetched per loader:", st["k"], "of", kper, file=sys.stderr)
                if not last:
                    e("s_branch L_join")
                    join.append(([t for t in ops[st["done"]+1:]], st["cons"], st["pre"]))
                    return
                e.label("L_join")
                if o.lprio: e("s_setprio 0")
                mine = [t for t in ops[st["done"]+1:]]
                for j in join:
                    assert j[0] == mine and j[1] == st["cons"] and j[2] == st["pre"], (j, mine)
            else:
                raise ValueError(tok)
        assert st["sig"] == 10
        nst[0] = st["nstamp"]
    join = []
    ylist = []
    def poll():
        e(f"s_cmp_lg_u32 s{sLW}, 0")
        e("s_cbranch_scc1 L_nopoll")
        e(f"s_mul_i32 s{sT0}, s{sM64}, {o.fs1}")
        e(f"s_add_u32 s{sT0}, s{sT0}, {FLAGB}")
        e(f"v_mul_u32_u24 v5, {o.fs2}, v0")
        e(f"v_mov_b32 v6, 1")
        e(f"s_mov_b32 s{sCNT}, 0")
        e("s_mov_b64 exec, 0xffffffff")
        if o.psleep:
            e("s_branch L_poll0")
        e.label("L_poll")
        if o.psleep:
            e(f"s_sleep {o.psleep}")
            e.label("L_poll0")
        e(f"buffer_load_dwordx2 v[24:25], v5, s[{SH}:{SH+3}], s{sT0} offen sc1")
        e(f"s_add_u32 s{sCNT}, s{sCNT}, 1")
        e("s_waitcnt vmcnt(0)")
        e(f"v_readfirstlane_b32 s{sT1}, v28")
        e("v_cmp_ne_u64 vcc, v[24:25], v[28:29]")
        e(f"s_cmp_ge_u32 s{sCNT}, {SPIN}")
        e("s_cbranch_scc1 L_polldone")
        e(f"s_cmp_eq_u32 s{sT1}, 0")
        e("s_cbranch_scc1 L_renonce")
        e("s_cbranch_vccz L_polldone")
        e(f"s_and_b32 s{sT1}, vcc_lo, 0x7fff")
        e("s_cbranch_scc1 L_poll1")
        e("s_mov_b64 exec, 1")
        e(f"ds_write_b32 v{vFL}, v6 offset:32")
        e("s_mov_b64 exec, 0xffffffff")
        e.label("L_poll1")
        e(f"s_and_b32 s{sT1}, vcc_lo, 0xffff8000")
        e("s_cbranch_scc1 L_poll")
        e("s_mov_b64 exec, 1")
        e(f"ds_write_b32 v{vFL}, v6 offset:36")
        e("s_mov_b64 exec, 0xffffffff")
        e("s_branch L_poll")
        e.label("L_renonce")
        e(f"buffer_load_dwordx2 v[28:29], off, s[{SDBG}:{SDBG+3}], 0 sc1")
        e("s_branch L_poll")
        e.label("L_polldone")
        e("s_mov_b64 exec, 1")
        e(f"ds_write2_b32 v{vFL}, v6, v6 offset0:8 offset1:9")
        e("s_mov_b64 exec, -1")
        if stamps: e(f"v_writelane_b32 v{STV}, s{sCNT}, 31")
        e.label("L_nopoll")

    e(f"s_lshl_b32 s{sT2}, s{sHALF}, 2")
    e(f"s_add_u32 s{sT2}, s{sT2}, s{sT0}")
    e(f"s_lshl_b32 s{sT3}, s{sLW}, 6")
    e(f"v_add_u32 v5, s{sT3}, v0")
    e(f"v_mul_u32_u24 v6, 43691, v5")
    e(f"v_lshrrev_b32 v6, 19, v6")
    e(f"v_mul_u32_u24 v7, 12, v6")
    e(f"v_sub_u32 v7, v5, v7")
    e(f"s_bfe_u32 s{sT3}, s{sUST}, 0x10001")
    e(f"v_xor_b32 v6, s{sT3}, v6")
    e(f"v_mul_u32_u24 v6, {WROW}, v6")
    e(f"s_lshl_b32 s{sT3}, s{sUCNT}, 1")
    e(f"v_cmp_le_u32 vcc, s{sT3}, v7")
    e(f"v_lshl_add_u32 v6, v7, 4, v6")
    e(f"v_mov_b32 v7, 0x40000000")
    e(f"s_and_b32 s{sN}, s{sT2}, 1")
    e(f"v_cndmask_b32 v6, v6, v7, vcc")
    e(f"s_lshl_b32 s{sT3}, s{sN}, 5")
    e(f"v_xor_b32 v{vWA}, s{sT3}, v6")
    e(f"v_xor_b32 v{vWB}, 32, v{vWA}")
    e(f"s_lshr_b32 s{sT2}, s{sT2}, 1")
    e(f"s_lshl_b32 s{sT0}, s{sUST}, 5")
    e(f"s_lshl_b32 s{sT1}, s{sLW}, 10")
    e(f"s_mul_i32 s{sT3}, s{sN}, 12288")
    e(f"s_add_u32 s{sT1}, s{sT1}, s{sT3}")
    e(f"s_add_u32 s{sT1}, s{sT1}, {W1B}")
    e(f"s_mul_i32 s{sT3}, s{sN}, {-24576 & 0xffffffff}")
    e(f"s_add_u32 s{sT3}, s{sT3}, 12288")
    for k in range(4):
        e(f"s_mul_i32 s{sO+k}, s{sT2}, {16*WROW}")
        e(f"s_add_u32 s{sO+k}, s{sO+k}, s{sT0}")
        e(f"s_mul_i32 s{sLA+k}, s{sT2}, 3072")
        e(f"s_add_u32 s{sLA+k}, s{sLA+k}, s{sT1}")
        e(f"s_add_u32 s{sLB+k}, s{sLA+k}, s{sT3}")
        if k < 3:
            e(f"s_add_u32 s{sT2}, s{sT2}, 1")
            e(f"s_and_b32 s{sT2}, s{sT2}, 3")
    e(f"s_mov_b32 s{SW1+2}, 1409024")
    e(f"s_mov_b32 s{SW1+3}, 0x20000")
    e(f"s_mov_b32 s{SW3+2}, 1409024")
    e(f"s_mov_b32 s{SW3+3}, 0x20000")
    e(f"v_lshlrev_b32 v{vP}, 4, v0")
    e(f"v_add_u32 v{vP}, s{sLA}, v{vP}")
    e(f"v_add_u32 v{vP+1}, {2*SLOT}, v{vP}")
    e(f"s_cmp_eq_u32 s{sN}, 0")
    e("s_waitcnt lgkmcnt(0)")
    e(f"s_cselect_b32 s{SW1}, s6, s8")
    e(f"s_cselect_b32 s{SW1+1}, s7, s9")
    e(f"s_cselect_b32 s{SW3}, s8, s6")
    e(f"s_cselect_b32 s{SW3+1}, s9, s7")
    e(f"s_and_b32 s{SW1+1}, s{SW1+1}, 0xffff")
    e(f"s_and_b32 s{SW3+1}, s{SW3+1}, 0xffff")
    if stamps:
        e(f"v_writelane_b32 v{STV}, s90, 0")
    programs("w")

    e.label("L_xload")
    e(f"v_xor_b32 v5, v4, v3")
    e(f"v_lshlrev_b32 v5, 4, v5")
    e(f"v_lshl_add_u32 v{vX}, v2, 10, v5")
    e(f"v_xor_b32 v5, 64, v{vX}")
    e(f"v_add_u32 v{vX+1}, {7168}, v5")
    e(f"v_add_u32 v{vX+2}, {2*7168}, v{vX}")
    e(f"v_add_u32 v{vX+3}, {3*7168}, v5")
    e(f"s_lshl_b32 s{sT0}, s{sMBLK}, 17")
    for j in range(4):
        e(f"s_lshl_b32 s{sLA+j}, s{sT1}, 12")
        e(f"s_lshl_b32 s{sO+j}, s{sT1}, 15")
        e(f"s_add_u32 s{sO+j}, s{sO+j}, s{sT0}")
        if j < 3:
            e(f"s_add_u32 s{sT1}, s{sT1}, 1")
            e(f"s_and_b32 s{sT1}, s{sT1}, 3")
    e(f"s_mov_b32 s{SX+2}, 2097152")
    e(f"s_mov_b32 s{SX+3}, 0x20000")
    e(f"v_lshlrev_b32 v{vP}, 4, v0")
    e(f"v_add_u32 v{vP}, s{sLA}, v{vP}")
    e(f"v_add_u32 v{vP+1}, {2*SLOT}, v{vP}")
    e("s_waitcnt lgkmcnt(0)")
    e(f"s_mov_b32 s{SX}, s4")
    e(f"s_and_b32 s{SX+1}, s5, 0xffff")
    if stamps:
        e(f"v_writelane_b32 v{STV}, s90, 0")
    programs("x")
    stamp()
    if stamps:
        e(f"s_cmp_lg_u32 s{sLW}, {o.stampw}")
        e("s_cbranch_scc1 L_end")
        stamp_out(0x900000)
    e("s_endpgm")

    e.label("L_compute")
    e("s_waitcnt lgkmcnt(0)")
    if o.kmall:
        e(f"s_lshl_b32 s88, s2, 2")
        e(f"s_add_u32 s88, s88, s{sLW}")
        e(f"s_mul_i32 s88, s88, 11")
        e(f"s_min_u32 s88, s88, {11008 - 11}")
        e(f"s_lshl_b32 s88, s88, 7")
        e(f"s_add_u32 s88, s10, s88")
        e(f"s_addc_u32 s89, s11, 0")
        for i in range(7):
            e(f"s_load_dwordx2 s[100:101], s[88:89], {128*i + 60}")
    if o.cpf:
        e(f"s_cmp_lg_u32 s{sLW}, 0")
        e("s_cbranch_scc1 L_nocpf")
        e("s_getpc_b64 s[84:85]")
        e.label("L_pc")
        e(f"s_sub_u32 s84, s84, L_pc-{NAME}_kernel")
        e("s_subb_u32 s85, s85, 0")
        e("s_lshr_b32 s86, s2, 3")
        e("s_lshl_b32 s86, s86, 9")
        e("v_lshlrev_b32 v2, 7, v0")
        e("v_add_u32 v2, s86, v2")
        e(f"v_min_u32 v2, L_codeend-{NAME}_kernel-4, v2")
        e("s_mov_b64 exec, 15")
        e("global_load_dword v238, v2, s[84:85]")
        e("s_mov_b64 exec, -1")
        e.label("L_nocpf")
    p2ids()
    ACC = 0
    FR = [96, 116, 136, 156]
    OV = 192
    vXA = 240
    vA0, vA1 = 244, 245
    vL16 = 246
    vB = 247
    vT = 248
    vNC = 254
    vOUT = 236
    sWR, sWC = 69, 70
    sSLOTB, sH0, sH1, sNV, sHB, sEX, sOUTO, sTG = range(71, 79)
    sK = 82
    e(f"s_and_b32 s{sWR}, s{sLW}, 1")
    e(f"s_lshr_b32 s{sWC}, s{sLW}, 1")
    e(f"v_and_b32 v{vT}, 31, v0")
    e(f"v_lshrrev_b32 v{vT+1}, 5, v0")
    e(f"v_bfe_u32 v{vT+2}, v0, 1, 3")
    e(f"v_xor_b32 v{vT+2}, v{vT+2}, v{vT+1}")
    e(f"s_lshl_b32 s{sT0}, s{sWR}, 13")
    e(f"v_lshlrev_b32 v{vT}, 7, v{vT}")
    e(f"v_add_u32 v{vT}, s{sT0}, v{vT}")
    for t in range(4):
        e(f"v_xor_b32 v{vT+3}, {2*t}, v{vT+2}")
        e(f"v_lshl_add_u32 v{vXA+t}, v{vT+3}, 4, v{vT}")
    e(f"v_bfe_u32 v{vT}, v0, 2, 2")
    e(f"s_bfe_u32 s{sT0}, s{sUST}, 0x10001")
    e(f"v_xor_b32 v{vT}, s{sT0}, v{vT}")
    e(f"v_lshl_add_u32 v{vT}, v{vT+1}, 3, v{vT}")
    e(f"v_mul_u32_u24 v{vT}, 192, v{vT}")
    e(f"v_and_b32 v{vT+2}, 3, v0")
    e(f"v_lshl_add_u32 v{vT}, v{vT+2}, 3, v{vT}")
    e(f"s_mul_i32 s{sT0}, s{sWC}, 96")
    e(f"s_add_u32 s{sT0}, s{sT0}, {W1B}")
    e(f"v_add_u32 v{vT}, s{sT0}, v{vT}")
    e(f"v_bfe_u32 v{vT+2}, v0, 4, 1")
    e(f"s_cmp_eq_u32 s{sWC}, 0")
    csel(sT0, 12288+32, 12288-32)
    csel(sT1, 12288-32, 12288+32)
    e(f"v_mul_lo_u32 v{vT+3}, v{vT+2}, s{sT0}")
    e(f"v_add_u32 v{vA0}, v{vT}, v{vT+3}")
    e(f"v_mul_lo_u32 v{vT+3}, v{vT+2}, s{sT1}")
    e(f"v_add_u32 v{vA1}, v{vT}, v{vT+3}")
    e(f"v_lshlrev_b32 v{vL16}, 4, v0")
    e(f"v_bfe_u32 v{vT}, v0, 2, 2")
    e(f"v_lshl_add_u32 v{vT}, v{vT+1}, 2, v{vT}")
    e(f"v_lshlrev_b32 v{vT}, 7, v{vT}")
    e(f"v_bfe_u32 v{vT+2}, v0, 4, 1")
    e(f"v_lshl_add_u32 v{vT}, v{vT+2}, 5, v{vT}")
    e(f"v_and_b32 v{vT+2}, 3, v0")
    e(f"v_lshl_add_u32 v{vT}, v{vT+2}, 3, v{vT}")
    e(f"v_bfe_u32 v{vT+2}, v0, 3, 1")
    e(f"v_lshl_add_u32 v{vB}, v{vT+2}, 6, v{vT}")
    e(f"s_lshl_b32 s{sT0}, s{sWC}, 6")
    e(f"v_xor_b32 v{vB}, s{sT0}, v{vB}")
    e(f"v_and_b32 v{vOUT}, 31, v0")
    e(f"v_lshlrev_b32 v{vOUT}, 10, v{vOUT}")
    e(f"v_lshl_add_u32 v{vOUT}, v{vT+1}, 4, v{vOUT}")
    e(f"s_lshl_b32 s{sOUTO}, s{sM64}, 1")
    e(f"s_add_u32 s{sOUTO}, s{sOUTO}, s{sWR}")
    e(f"s_mul_i32 s{sHB}, s{sOUTO}, 86")
    e(f"s_lshl_b32 s{sOUTO}, s{sOUTO}, 15")
    e(f"s_lshl_b32 s{sT1}, s{sNBLK}, 7")
    e(f"s_add_u32 s{sOUTO}, s{sOUTO}, s{sT1}")
    e(f"s_add_u32 s{sOUTO}, s{sOUTO}, s{sT0}")
    e(f"s_mul_i32 s{sT1}, s{sWC}, 43")
    e(f"s_add_u32 s{sHB}, s{sHB}, s{sT1}")
    e(f"s_cmp_eq_u32 {sROT}, 0")
    e(f"s_cselect_b32 s{sTG}, {NOV+NC1}, 0")
    e(f"s_add_u32 s{sTG}, s{sTG}, s{sHB}")
    e(f"s_lshl_b32 s{sTG}, s{sTG}, 10")
    e(f"s_mul_i32 s{sT1}, {sROT}, {ROT}")
    e(f"s_add_u32 s{sHB}, s{sHB}, s{sT1}")
    e(f"s_lshl_b32 s{sHB}, s{sHB}, 10")
    e(f"s_lshl_b32 s{sH0}, s{sMBLK}, 1")
    e(f"s_add_u32 s{sH0}, s{sH0}, s{sWR}")
    e(f"s_mul_i32 s{sEX}, s{sH0}, {o.fs1}")
    e(f"s_lshl_b32 s{sT3}, s{sSLICE}, 1")
    e(f"s_add_u32 s{sT3}, s{sT3}, s{sWC}")
    e(f"s_mul_i32 s{sT3}, s{sT3}, {o.fs2}")
    e(f"s_add_u32 s{sEX}, s{sEX}, s{sT3}")
    e(f"s_add_u32 s{sEX}, s{sEX}, {FLAGB}")
    e(f"s_mul_i32 s{sH0}, s{sH0}, {2*86}")
    e(f"s_add_u32 s{sH0}, s{sH0}, s{sUST}")
    e(f"s_mul_i32 s{sT1}, s{sWC}, 3")
    e(f"s_add_u32 s{sH0}, s{sH0}, s{sT1}")
    e(f"s_lshl_b32 s{sH0}, s{sH0}, 10")
    e(f"s_add_u32 s{sH1}, s{sH0}, {86*1024}")
    e(f"s_sub_u32 s{sNV}, s{sUCNT}, s{sT1}")
    e(f"s_mov_b32 s{sK}, 0xbfb8aa3b")
    e(f"s_mov_b32 s{sK+1}, 0xbfb8aa3b")
    vO0, vO1 = 248, 249
    e(f"s_lshl_b32 s{sT0}, s{sWC}, 13")
    e(f"v_add_u32 v{vO0}, s{sT0}, v{vB}")
    e(f"v_xor_b32 v{vO1}, 64, v{vO0}")
    srd(SH, 16, WSB)
    srd(SOUT, 12, 2097152)
    srd(SDBG, 14, 256)
    e(f"s_or_b32 s{sT0}, s2, s{sLW}")
    e(f"s_cbranch_scc1 L_nopub")
    e("s_memrealtime s[84:85]")
    e("s_waitcnt lgkmcnt(0)")
    e("s_or_b32 s84, s84, 1")
    e("v_mov_b32 v2, s84")
    e("v_mov_b32 v3, s85")
    e("s_mov_b64 exec, 1")
    e(f"buffer_store_dwordx2 v[2:3], off, s[{SDBG}:{SDBG+3}], 0 sc1")
    e("s_mov_b64 exec, -1")
    e("s_nop 1")
    e.label("L_nopub")
    if stamps:
        e(f"v_writelane_b32 v{STV}, s90, 0")
        nst[0] = 1
    for r in range(0, 96, 2):
        e(f"v_mov_b64 {vr(ACC+r,2)}, 0")
    if o.prewr:
        e(f"v_lshrrev_b32 v{vF}, 1, v{vL16}")
        e("s_mov_b64 exec, 0xffff")
        e(f"buffer_store_dwordx2 v[0:1], v{vF}, s[{SH}:{SH+3}], s{sEX} offen sc1")
        e("s_mov_b64 exec, -1")
    if o.kov:
        e(f"s_mul_i32 s88, s{sWC}, 688")
        e(f"s_mul_i32 s89, s{sWR}, {ROT*16}")
        e(f"s_add_u32 s88, s88, s89")
        e(f"s_lshr_b32 s89, s2, 3")
        e(f"s_lshl_b32 s89, s89, 1")
        e(f"s_add_u32 s88, s88, s89")
        e(f"s_lshl_b32 s88, s88, 10")
        e(f"s_add_u32 s88, s10, s88")
        e(f"s_addc_u32 s89, s11, 0")
        for i in range(16):
            e(f"s_load_dwordx2 s[100:101], s[88:89], {128*i + 60}")
    if o.kmall:
        for i in range(7, 11):
            e(f"s_load_dwordx2 s[100:101], s[88:89], {128*i + 60}")
    e(f"s_mov_b32 s{sN}, 0")
    e(f"s_mov_b32 s{sSLOTB}, 0")
    if o.istamp: e("s_mov_b32 s97, 0")

    def reads(t):
        f = FR[t]
        L = [f"ds_read_b128 {vr(f,4)}, v{vXA+t}"]
        def w(uj):
            a = vA1 if uj == 1 else vA0
            for rd in range(2):
                L.append(f"ds_read_b64_tr_b16 {vr(f+8+4*uj+2*rd,2)}, v{a} offset:{uj*32 + (16*t+4*rd)*192}")
        w(0)
        L.append(f"ds_read_b128 {vr(f+4,4)}, v{vXA+t} offset:4096")
        w(1); w(2)
        return L
    def mf(k, st):
        uj, mi = k // 2, k % 2
        f = FR[st]
        a = ACC + 16*(mi*3+uj)
        if not o.nomfma:
            e(f"v_mfma_f32_32x32x16_bf16 {vr(a,16)}, {vr(f+8+4*uj,4)}, {vr(f+4*mi,4)}, {vr(a,16)}")

    if o.kov or o.kmall: e("s_waitcnt lgkmcnt(0)")
    e("s_barrier")
    stamp()
    for s in reads(0): e(s)
    e("s_waitcnt lgkmcnt(1)")
    for s in reads(1): e(s)
    e.label("L_p1")
    for t in range(4):
        R = reads((t+2) & 3)
        e("s_waitcnt lgkmcnt(8)")
        if t == 2:
            mf(0, t)
            e(f"s_add_u32 s{sN}, s{sN}, 1")
            e(f"s_and_b32 s{sSLOTB}, s{sN}, 3")
            csel(sT0, SLOT, (-3*SLOT) & 0xffffffff)
            e(f"v_add_u32 v{vXA}, s{sT0}, v{vXA}")
            e(f"v_add_u32 v{vA0}, s{sT0}, v{vA0}")
            e(f"v_add_u32 v{vA1}, s{sT0}, v{vA1}")
            mf(1, t)
            e("s_waitcnt lgkmcnt(0)")
            e("s_barrier")
            for k in range(2, 6):
                mf(k, t)
                for s in R[2*k-4:2*k-2]: e(s)
            for tt in range(1, 4):
                e(f"v_add_u32 v{vXA+tt}, s{sT0}, v{vXA+tt}")
        else:
            for k in range(6):
                mf(k, t)
                for s in R[2*k:2*k+2]: e(s)
                if t == 3 and k == 4:
                    e(f"s_cmp_ge_u32 s{sN}, 6")
                    e("s_cbranch_scc1 L_p1_x")
                    e.label("L_p1_ovback")
                    e(f"s_cmp_lt_u32 s{sN}, 8")
    e("s_cbranch_scc1 L_p1")
    e("s_branch L_p1_done")
    e.label("L_p1_x")
    e(f"s_cmp_eq_u32 s{sN}, 7")
    e("s_cbranch_scc1 L_p1_ov")
    e(f"s_cmp_eq_u32 s{sN}, 8")
    e("s_cbranch_scc1 L_p1_ovback")
    e(f"buffer_load_dwordx2 {vr(vNC,2)}, off, s[{SDBG}:{SDBG+3}], 0 sc1")
    e(f"s_lshl_b32 s{sT1}, s{sLW}, 4")
    e(f"v_mov_b64 {vr(vF,2)}, 0")
    e(f"v_mov_b64 {vr(vF+2,2)}, 0")
    e(f"v_add_u32 v{vSG}, s{sT1}, v{vFL}")
    e("s_mov_b64 exec, 1")
    e(f"ds_write_b128 v{vSG}, {vr(vF,4)}")
    e("s_mov_b64 exec, -1")
    e("s_branch L_p1_ovback")
    e.label("L_p1_ov")
    e("s_waitcnt lgkmcnt(0)")
    for u in range(NOV):
        for dj in range(2):
            for rd in range(2):
                e(f"ds_read_b64_tr_b16 {vr(OV+8*u+4*dj+2*rd,2)}, v{(vO0, vO1)[dj]} offset:{u*2048+1024*rd}")
        if u == 1: e("s_waitcnt lgkmcnt(4)")
    e("s_branch L_p1_ovback")
    e.label("L_p1_done")
    e.drain()
    stamp()
    e(f"s_mov_b32 s{sN}, 0")
    e.label("L_nonce")
    e("s_waitcnt vmcnt(0)")
    e(f"v_readfirstlane_b32 s{sT0}, v{vNC}")
    e(f"s_add_u32 s{sN}, s{sN}, 1")
    e(f"s_cmp_lg_u32 s{sT0}, 0")
    e("s_cbranch_scc1 L_nonce_ok")
    e(f"s_cmp_ge_u32 s{sN}, {SPIN}")
    e("s_cbranch_scc1 L_nonce_ok")
    e(f"buffer_load_dwordx2 {vr(vNC,2)}, off, s[{SDBG}:{SDBG+3}], 0 sc1")
    e("s_branch L_nonce")
    e.label("L_nonce_ok")
    e("s_nop 7")
    T = 96
    for uj in range(3):
        if uj == 1:
            e(f"s_cmp_lt_u32 s{sNV}, 2")
            e("s_cbranch_scc1 L_epi_done")
        for mi in range(2):
            a = ACC + 16*(mi*3+uj)
            tt = T + 8*mi
            for r in range(0, 8, 2):
                e(f"v_pk_mul_f32 {vr(tt+r,2)}, {vr(a+r,2)}, s[{sK}:{sK+1}]")
            for r in range(8):
                e(f"v_exp_f32 v{tt+r}, v{tt+r}")
            for r in range(0, 8, 2):
                e(f"v_pk_mul_f32 {vr(a+r,2)}, {vr(a+r,2)}, {vr(a+8+r,2)}")
            for r in range(0, 8, 2):
                e(f"v_pk_add_f32 {vr(tt+r,2)}, {vr(tt+r,2)}, 1.0 op_sel_hi:[1,0]")
            for r in range(8):
                e(f"v_rcp_f32 v{tt+r}, v{tt+r}")
            e("s_nop 0")
            for r in range(0, 8, 2):
                e(f"v_pk_mul_f32 {vr(a+r,2)}, {vr(a+r,2)}, {vr(tt+r,2)}")
            for r in range(4):
                e(f"v_cvt_pk_bf16_f32 v{a+8+r}, v{a+2*r}, v{a+2*r+1}")
            so = sH0 if mi == 0 else sH1
            e(f"buffer_store_dwordx4 {vr(a+8,4)}, v{vL16}, s[{SH}:{SH+3}], s{so} offen offset:{1024*uj} sc1")
    e.label("L_epi_done")
    signal(9)
    stamp()
    HR, NH = 0, 32
    AC2 = 128
    WB = 160
    NB = 4
    vC1 = [240, 241]; vC2 = [242, 243]
    vEW, vER, vGO = 244, 245, 250
    e(f"s_cmp_eq_u32 s{sWC}, s{sR4}")
    csel(sT0, SLOT, 2*SLOT)
    csel(sT1, 2*SLOT, SLOT)
    csel(sT2, 3*SLOT, 0)
    e(f"v_add_u32 v{vC1[0]}, s{sT0}, v{vB}")
    e(f"v_add_u32 v{vC2[0]}, s{sT2}, v{vB}")
    e(f"v_xor_b32 v{vC1[1]}, 64, v{vC1[0]}")
    e(f"v_xor_b32 v{vC2[1]}, 64, v{vC2[0]}")
    e(f"s_lshl_b32 s{sT2}, s{sWR}, 12")
    e(f"s_add_u32 s{sT0}, s{sT0}, s{sT2}")
    e(f"s_add_u32 s{sT1}, s{sT1}, s{sT2}")
    e(f"v_add_u32 v{vEW}, s{sT0}, v{vL16}")
    e(f"v_add_u32 v{vER}, s{sT1}, v{vL16}")
    e(f"s_lshl_b32 s{sT2}, s{sWC}, 2")
    e(f"v_add_u32 v{vGO}, s{sT2}, v{vFL}")
    if o.fullflag: e(f"v_lshrrev_b32 v{vF}, 1, v{vL16}")
    e("s_mov_b64 exec, 1")
    e("s_waitcnt vmcnt(0)")
    if o.fullflag:
        e("s_mov_b64 exec, 0xffff")
        e(f"buffer_store_dwordx2 {vr(vNC,2)}, v{vF}, s[{SH}:{SH+3}], s{sEX} offen sc1")
    else:
        e(f"buffer_store_dwordx2 {vr(vNC,2)}, off, s[{SH}:{SH+3}], s{sEX} sc1")
    signal(10)
    stamp()
    e(f"s_mov_b32 s{sCNT}, 0")
    e.label("L_go")
    e(f"ds_read_b32 v{vF}, v{vGO} offset:32")
    e(f"s_add_u32 s{sCNT}, s{sCNT}, 1")
    e("s_waitcnt lgkmcnt(0)")
    e(f"v_readfirstlane_b32 s{sT3}, v{vF}")
    e(f"s_cmp_lg_u32 s{sT3}, 0")
    e("s_cbranch_scc1 L_gone")
    e(f"s_cmp_lt_u32 s{sCNT}, {4*SPIN}")
    e("s_cbranch_scc1 L_go")
    e.label("L_gone")
    stamp()
    def w2regs(uu):
        return OV + 8*uu if uu < NOV else WB + 8*(uu % NB)
    def w2reads(uu):
        if uu < NOV: return []
        b = w2regs(uu)
        A, k = (vC1, uu - NOV) if uu < NOV + NC1 else (vC2, uu - NOV - NC1)
        L = []
        for dj in (1, 0):
            for rd in range(2):
                L.append((f"u{uu}_{dj}{rd}", f"ds_read_b64_tr_b16 {vr(b+4*dj+2*rd,2)}, v{A[dj]} offset:{k*2048+1024*rd}"))
        return L
    def hload(uu):
        so, k = (sHB, uu) if uu < NOV + NC1 else (sTG, uu - NOV - NC1)
        e(f"buffer_load_dwordx4 {vr(HR+4*(uu%NH),4)}, v{vL16}, s[{SH}:{SH+3}], s{so} offen offset:{1024*(k%4)} sc1")
        if k % 4 == 3:
            e(f"s_add_u32 s{so}, s{so}, 4096")
    PD = o.pd
    assert PD < NH
    for i in range(PD):
        hload(i)
    issued = PD
    spin4(0, 9, sleep=0)
    stamp()
    slow = []
    for uu in range(43):
        R = w2reads(uu+3) if uu + 3 < 43 else []
        b = w2regs(uu)
        e(f"s_waitcnt vmcnt({issued - uu - 1})")
        for q, dj in enumerate((1, 0)):
            e.need(f"u{uu}_{dj}0", f"u{uu}_{dj}1")
            a = AC2 + 16*dj
            c = "0" if uu == 0 else vr(a, 16)
            e(f"v_mfma_f32_32x32x16_bf16 {vr(a,16)}, {vr(b+4*dj,4)}, {vr(HR+4*(uu%NH),4)}, {c}")
            for tag, s in R[2*q:2*q+2]:
                e.lds(tag, s)
        if issued < 43:
            hload(issued); issued += 1
        def check(name, off, target, at):
            if uu == at - 2:
                e.lds(name, f"ds_read_b128 {vr(vF,4)}, v{vFL} offset:{off}")
            if uu == at:
                e.need(name)
                min4(sT3)
                e(f"s_cmp_ge_u32 s{sT3}, {target}")
                e(f"s_cbranch_scc0 L_{name}_wait")
                e.label(f"L_{name}_go")
                slow.append((name, off, target))
        check("c2", 0, 10, NOV + NC1 - 4)
        if uu == NOV + NC1:
            e(f"v_mov_b32 v{vSG}, 11")
            e("s_mov_b64 exec, 1")
            e.lds("sig", f"ds_write_b32 v{vMY}, v{vSG}")
            e("s_mov_b64 exec, -1")
        check("ex", 16, 11, 41)
    stamp()
    e("s_nop 10")
    for j in range(4):
        e(f"ds_write_b128 v{vEW}, {vr(AC2+16+4*j,4)} offset:{1024*j}")
    e("s_waitcnt lgkmcnt(0)")
    e("s_barrier")
    for j in range(4):
        e(f"ds_read_b128 {vr(64+4*j,4)}, v{vER} offset:{1024*j}")
    for j in range(4):
        e(f"s_waitcnt lgkmcnt({3-j})")
        for r in range(4*j, 4*j+4, 2):
            e(f"v_pk_add_f32 {vr(AC2+r,2)}, {vr(AC2+r,2)}, {vr(64+r,2)}")
        for r in range(2*j, 2*j+2):
            e(f"v_cvt_pk_bf16_f32 v{80+r}, v{AC2+2*r}, v{AC2+2*r+1}")
        if j & 1:
            e("s_nop 1")
            e(f"v_permlane32_swap_b32 v{78+2*j}, v{80+2*j}")
            e(f"v_permlane32_swap_b32 v{79+2*j}, v{81+2*j}")
            e(f"buffer_store_dwordx4 {vr(78+2*j,4)}, v{vOUT}, s[{SOUT}:{SOUT+3}], s{sOUTO} offen offset:{16*(j-1)}")
    if stamps:
        stamp()
        e("s_waitcnt vmcnt(0)")
        stamp()
        e(f"s_cmp_lg_u32 s{sLW}, 0")
        e("s_cbranch_scc1 L_end")
        stamp_out(0x800000)
    e.label("L_end")
    e("s_endpgm")
    for name, off, target in slow:
        e.label(f"L_{name}_wait")
        spin4(off, target, sleep=0)
        e(f"s_branch L_{name}_go")
    e.label("L_codeend")

    head = f"""; Fused SwiGLU MLP: out = (silu(x@w1) * (x@w3)) @ w2   (bf16, M=2048 D=512 F=1376)
; @launch grid=(256,1,1) block=(512,1,1) lds=163840
.amdgcn_target "amdgcn-amd-amdhsa--gfx950"
.text
.globl {NAME}_kernel
.p2align 8
.type {NAME}_kernel,@function
{NAME}_kernel:
"""
    tail = f""".section .rodata,"a"
.p2align 6
.amdhsa_kernel {NAME}_kernel
  .amdhsa_next_free_vgpr 256
  .amdhsa_next_free_sgpr 102
  .amdhsa_accum_offset 256
  .amdhsa_group_segment_fixed_size 0
  .amdhsa_kernarg_size 56
  .amdhsa_user_sgpr_count 2
  .amdhsa_user_sgpr_kernarg_segment_ptr 1
  .amdhsa_system_sgpr_workgroup_id_x 1
.end_amdhsa_kernel
"""
    return head + e.text() + tail

DEF = "S0 S1 R0 R1 B0 S2 S3 R2a B1 R2b R3 B2 S4 S5 R4a B3 R4b R5 B4 S6 S7 R6a B5 O R6b R7 N B6 W0 B7"

if __name__ == "__main__":
    ap = argparse.ArgumentParser()
    ap.add_argument("-o", default="/dev/stdout")
    for f in ("stamps", "nomfma", "nols", "cpf", "recheck", "nosig", "early", "istamp", "nochk", "nolsig", "norot", "kov", "kmall", "fullflag", "nora", "prewr"):
        ap.add_argument("--" + f, action="store_true")
    ap.add_argument("--fs1", type=int, default=4096)
    ap.add_argument("--fs2", type=int, default=8)
    ap.add_argument("--pd", type=int, default=12)
    ap.add_argument("--kc", type=int, default=0)
    ap.add_argument("--mparts", type=int, default=1)
    ap.add_argument("--psleep", type=int, default=0)
    ap.add_argument("--ysplit", default="4,3,3")
    ap.add_argument("--noload", type=int, default=0)
    ap.add_argument("--lsleep", type=int, default=1)
    ap.add_argument("--csleep", type=int, default=0)
    ap.add_argument("--krows", default="0,1376")
    ap.add_argument("--lprio", type=int, default=0)
    ap.add_argument("--stampw", type=int, default=0)
    ap.add_argument("--ovstage", type=int, default=7)
    ap.add_argument("--sched", default=DEF)
    ap.add_argument("--tail", default="J B8 C9 W1 W2 L8 W3 L9 Z")
    a = ap.parse_args()
    open(a.o, "w").write(gen(a))
```

```python
import sys, argparse, re

NAME = "standalone__glu_gated_swiglu__prompt"

class E:
    def __init__(self):
        self.lines = []
        self.pend = []
        self.uid = 0
    def __call__(self, s):
        self.lines.append("    " + s)
    def label(self, l):
        self.lines.append(l + ":")
    def new(self, p="L"):
        self.uid += 1
        return f"{p}_{self.uid}"
    def lds(self, tag, s):
        self.pend.append(tag)
        assert len(self.pend) <= 15, "lgkm overflow"
        self(s)
    def need(self, *tags):
        idx = -1
        for t in tags:
            if t in self.pend:
                idx = max(idx, self.pend.index(t))
        if idx >= 0:
            n = len(self.pend) - 1 - idx
            self(f"s_waitcnt lgkmcnt({n})")
            self.pend = self.pend[idx+1:]
    def drain(self):
        self("s_waitcnt lgkmcnt(0)")
        self.pend = []
    def text(self):
        return "\n".join(self.lines) + "\n"

def vr(a, n):
    return f"v[{a}:{a+n-1}]"

SLOT = 40960
W1B = 16384
FLAGB = 0x600000
WROW = 2752
FL = 2*SLOT - 64
SPIN = 0x100000
NOV, NC1, NC2 = 4, 19, 20
W2P = {0: (16*NOV, 16*NC1, SLOT, 6),
       1: (688 + 16*NOV, 16*NC1, 2*SLOT, 7),
       2: (16*(NOV+NC1), 16*NC2, 3*SLOT, 8),
       3: (688 + 16*(NOV+NC1), 16*NC2, 0, 8)}

def gen(o):
    e = E()
    stamps = o.stamps
    SX, SW1, SW3, SW2, SOUT, SDBG, SH = 20, 24, 28, 32, 36, 40, 44
    sWAVE, sXCD, sJJ, sHALF, sSLICE, sMBLK, sUST, sUCNT, sM128, sM64, sNBLK = range(50, 61)
    sT0, sT1, sT2, sT3, sN, sR4, sLW, sCNT = range(61, 69)
    ROT = 20
    sROT = "0" if o.norot else f"s{sHALF}"
    WSB = 0x10000000 if stamps else (FLAGB + 32*o.fs1)
    STV = 252
    nst = [0]
    def stamp():
        if stamps:
            n = nst[0]
            assert n < 31
            e("s_memrealtime s[94:95]")
            e("s_memtime s[92:93]")
            e("s_waitcnt lgkmcnt(0)")
            e.pend = []
            e("s_sub_u32 s92, s92, s98")
            e(f"v_writelane_b32 v{STV}, s94, {n}")
            e(f"v_writelane_b32 v{STV}, s92, {32+n}")
            nst[0] += 1
    def stamp_out(base):
        e("s_mov_b64 exec, -1")
        e(f"s_lshl_b32 s{sT0}, s2, 8")
        e(f"s_add_u32 s{sT0}, s{sT0}, {base}")
        e("v_mbcnt_lo_u32_b32 v5, -1, 0")
        e("v_mbcnt_hi_u32_b32 v5, -1, v5")
        e("v_lshlrev_b32 v5, 2, v5")
        e(f"buffer_store_dword v{STV}, v5, s[{SH}:{SH+3}], s{sT0} offen")
    def csel(dst, a, b):
        e(f"s_mov_b32 s{dst}, {b}")
        e(f"s_cmov_b32 s{dst}, {a}")
    def srd(base, ptr, nbytes):
        e(f"s_mov_b32 s{base}, s{ptr}")
        e(f"s_and_b32 s{base+1}, s{ptr+1}, 0xffff")
        e(f"s_mov_b32 s{base+2}, {nbytes}")
        e(f"s_mov_b32 s{base+3}, 0x20000")
    vFL, vMY, vF, vSG = 232, 233, 228, 234
    def min4(dst_s):
        e(f"v_min3_u32 v{vF}, v{vF}, v{vF+1}, v{vF+2}")
        e(f"v_min_u32 v{vF}, v{vF}, v{vF+3}")
        e("s_nop 0")
        e(f"v_readfirstlane_b32 s{dst_s}, v{vF}")
    def spin4(off, target, sleep=1):
        l, d = e.new("L_spin"), e.new("L_spun")
        e(f"s_mov_b32 s{sCNT}, 0")
        e.label(l)
        e(f"ds_read_b128 {vr(vF,4)}, v{vFL} offset:{off}")
        e(f"s_add_u32 s{sCNT}, s{sCNT}, 1")
        e("s_waitcnt lgkmcnt(0)")
        min4(sT3)
        e(f"s_cmp_ge_u32 s{sT3}, {target}")
        e(f"s_cbranch_scc1 {d}")
        if sleep: e(f"s_sleep {sleep}")
        e(f"s_cmp_lt_u32 s{sCNT}, {SPIN}")
        e(f"s_cbranch_scc1 {l}")
        e.label(d)
    def signal(val):
        e(f"v_mov_b32 v{vSG}, {val}")
        e("s_mov_b64 exec, 1")
        e(f"ds_write_b32 v{vMY}, v{vSG}")
        e("s_mov_b64 exec, -1")

    e("s_cmp_ge_u32 s2, 256")
    e("s_cbranch_scc1 L_end")
    e("s_load_dwordx8 s[4:11], s[0:1], 0")
    e(f"v_readfirstlane_b32 s{sWAVE}, v0")
    e("s_load_dwordx4 s[12:15], s[0:1], 32")
    e("s_load_dwordx2 s[16:17], s[0:1], 48")
    if stamps:
        e("s_memtime s[98:99]")
        e("s_memrealtime s[90:91]")
        e(f"v_mov_b32 v{STV}, 0")
    if o.cpf0:
        e("s_getpc_b64 s[84:85]")
        e.label("L_pc")
        e("s_lshr_b32 s86, s2, 3")
        e("v_lshl_add_u32 v237, s86, 2, v0")
        e("v_lshlrev_b32 v237, 7, v237")
        e("v_cmp_gt_u32 vcc, 4, v0")
        e(f"v_min_u32 v237, L_codeend-L_pc-4, v237")
        e("s_and_saveexec_b64 s[86:87], vcc")
        e("s_cbranch_execz L_nocpf")
        e("global_load_dword v238, v237, s[84:85]")
        e.label("L_nocpf")
        e("s_mov_b64 exec, s[86:87]")
    e(f"s_bitcmp1_b32 s{sWAVE}, 8")
    e("s_cbranch_scc1 L_compute" if o.ldfirst else "s_cbranch_scc0 L_compute")
    def ids():
        e(f"s_lshr_b32 s{sT0}, s2, 6")
        e(f"s_lshr_b32 s{sJJ}, s2, 3")
        e(f"s_add_u32 s{sT1}, s{sT0}, s{sJJ}")
        e(f"s_and_b32 s{sT1}, s{sT1}, 3")
        e(f"s_bfe_u32 s{sLW}, s{sWAVE}, 0x20006")
    def ids_w():
        e(f"s_and_b32 s{sT0}, s2, 3")
        e(f"s_lshl2_add_u32 s{sSLICE}, s{sT0}, s{sT1}")
        e(f"s_mul_i32 s{sUST}, s{sT0}, 22")
        e(f"s_mul_i32 s{sT2}, s{sT1}, 6")
        e(f"s_add_u32 s{sUST}, s{sUST}, s{sT2}")
        e(f"s_min_u32 s{sUST}, s{sUST}, 82")
        e(f"s_bitcmp1_b32 0xc888, s{sSLICE}")
        e(f"s_cselect_b32 s{sUCNT}, 4, 6")
    def ids_m():
        e(f"s_lshr_b32 s{sHALF}, s2, 7")
        e(f"s_and_b32 s{sT0}, s2, 4")
        e(f"s_lshl3_add_u32 s{sMBLK}, s{sHALF}, s{sT0}")
        e(f"s_bfe_u32 s{sT0}, s2, 0x20005")
        e(f"s_add_u32 s{sMBLK}, s{sMBLK}, s{sT0}")
    def syncaddr(first):
        e(f"v_mov_b32 v{vFL}, {FL}")
        e(f"s_lshl2_add_u32 s{sT0}, s{sLW}, {FL + first}")
        e(f"v_mov_b32 v{vMY}, s{sT0}")
    def p2ids():
        e(f"s_lshr_b32 s{sHALF}, s2, 7")
        e(f"s_and_b32 s{sT2}, s2, 7")
        e(f"s_lshl3_add_u32 s{sM128}, s{sHALF}, s{sT2}")
        e(f"s_bfe_u32 s{sT2}, s2, 0x10006")
        e(f"s_lshl1_add_u32 s{sM64}, s{sM128}, s{sT2}")
        e(f"s_bfe_u32 s{sNBLK}, s2, 0x30003")
        e(f"s_mov_b32 s{sR4}, {'0' if o.norot or o.nora else 's%d' % sT2}")

    sO, sLA, sLB, sW2O, sW2L, sSO, sPRE = 69, 73, 77, 81, 91, 86, 87
    vP = 8
    vX = 10; vWA, vWB = 10, 11
    vW2 = 20
    vSTG = 64
    vYS = 180
    if o.lprio: e(f"s_setprio {o.lprio}")
    ids()
    e(f"s_cmp_eq_u32 s{sLW}, 3")
    if o.xtop:
        e("s_cbranch_scc0 L_wload")
        xtop_at = len(e.lines)
        e.label("L_wload")
    else:
        e("s_cbranch_scc1 L_xload")

    KROWS = o.krows
    kfirst, kcount = [int(x) for x in KROWS.split(",")]
    kper_wg = (kcount * 8 + 31) // 32
    def kbase(first, per):
        e(f"s_lshr_b32 s88, s2, 3")
        e(f"s_mul_i32 s88, s88, {kper_wg}")
        e(f"s_mul_i32 s89, s{sLW}, {per}")
        e(f"s_add_u32 s88, s88, s89")
        e(f"s_add_u32 s88, s88, {first + kfirst*8}")
        e(f"s_min_u32 s88, s88, {11008 - per}")
        e(f"s_lshl_b32 s88, s88, 7")
        e(f"s_add_u32 s88, s10, s88")
        e(f"s_addc_u32 s89, s11, 0")
    kper = max(0, (kper_wg - 4*o.kc + 3) // 4)
    scheds = [x.split() for x in o.sched.split("|")]
    tailtok = o.tail.split()
    assert tailtok[0] == "J"
    def programs(kind):
        ng = len(scheds)
        if ng > 1:
            e(f"s_lshr_b32 s{sCNT}, s2, 5")
            e(f"s_add_u32 s{sCNT}, s{sCNT}, s{sSLICE}")
            e(f"s_and_b32 s{sCNT}, s{sCNT}, 1")
            e(f"s_cbranch_scc1 L_{kind}1")
        for g in range(ng):
            e.label(f"L_{kind}{g}")
            program(kind, scheds[g] + tailtok, kind == "x" and g == ng - 1)

    def program(kind, sched, last):
        ops = []
        st = dict(cons=0, dsw=False, w2=False, nstamp=1, done=-1, thr=0, k=0, sig=8, pre=0, bar=-1)
        staged = {}
        issued = {}
        nblk = 4 if kind == "x" else 8
        nshare = 4 if kind == "x" else 1
        def lst():
            if stamps and not o.nols:
                nst[0] = st["nstamp"]; stamp(); st["nstamp"] = nst[0]
        def vmem(tag, s):
            if st["thr"]: e(f"s_waitcnt vmcnt({st['thr']})")
            if o.noload and tag[0] == "st" and o.noload <= tag[1] < 8: return
            ops.append(tag); e(s)
        def wait_for(pred, commit=True):
            idx = max([i for i, t in enumerate(ops) if pred(t)], default=-1)
            if idx <= st["done"]:
                return
            n = min(63, len(ops) - 1 - idx)
            if commit: st["done"] = len(ops) - 1 - n
            e(f"s_waitcnt vmcnt({n})")
        def complete(lv):
            need = nblk if lv < 8 else 2
            if lv == o.ovstage: need += 1
            return issued.get(lv, 0) == need
        def land(lv, commit=True):
            assert complete(lv), f"level {lv} incomplete: {issued}"
            wait_for(lambda t: t == ("st", lv), commit)
            if st["dsw"]:
                e("s_waitcnt lgkmcnt(0)")
                if commit: st["dsw"] = False
            if not (o.nolsig and 0 < lv < 7): signal(lv + 1)
        def need_cons(c):
            if c <= st["cons"] or (o.nosig and c < 9): return
            ok = e.new("L_free")
            if st["pre"]:
                if st["pre"] == 1:
                    e("s_waitcnt lgkmcnt(0)")
                    st["dsw"] = False
                    min4(sPRE)
                    st["pre"] = 2
                e(f"s_cmp_ge_u32 s{sPRE}, {c}")
                e(f"s_cbranch_scc1 {ok}")
            if not st["pre"] or o.recheck:
                e(f"ds_read_b128 {vr(vF,4)}, v{vFL} offset:16")
                e("s_waitcnt lgkmcnt(0)")
                if not st["pre"]: st["dsw"] = False
                min4(sT3)
                e(f"s_cmp_ge_u32 s{sT3}, {c}")
                e(f"s_cbranch_scc1 {ok}")
            lv = st["sig"]
            while complete(lv):
                land(lv, commit=False); lv += 1
            assert lv >= min(c, 8), f"deadlock: waiting for consumed>={c} with only {lv} levels signalled"
            spin4(16, c, sleep=o.lsleep)
            e.label(ok)
            st["cons"] = c
            lastso[0] = None
        def xblock(n, j, regs=None):
            assert regs is not None or n <= 3 or st["bar"] >= n - 3
            e(f"s_add_u32 s{sSO}, s{sO+j}, {128*n}")
            if regs is None:
                e(f"s_add_u32 m0, s{sLA+j}, {(n%4)*SLOT}")
                e("s_nop 0")
                for i in range(4):
                    vmem(("st", n), f"buffer_load_dwordx4 v{vX+i}, s[{SX}:{SX+3}], s{sSO} offen offset:{1024*i} {o.xfl} lds")
                issued[n] = issued.get(n, 0) + 1
            else:
                for i in range(4):
                    vmem(("rg", n), f"buffer_load_dwordx4 {vr(regs+4*i,4)}, v{vX+i}, s[{SX}:{SX+3}], s{sSO} offen offset:{1024*i}")
        lastso = [None]
        def wblock(n, j, regs=None):
            assert regs is not None or n <= 3 or st["bar"] >= n - 3
            k, b = j >> 1, j & 1
            S = SW3 if b else SW1
            v = vWB if b else vWA
            if regs is None:
                e(f"s_add_u32 m0, s{(sLB if b else sLA)+k}, {(n%4)*SLOT}")
            if lastso[0] != (n, k):
                e(f"s_add_u32 s{sSO}, s{sO+k}, {64*WROW*n}")
                lastso[0] = (n, k)
            elif regs is None:
                e("s_nop 0")
            if regs is None:
                vmem(("st", n), f"buffer_load_dwordx4 v{v}, s[{S}:{S+3}], s{sSO} offen {o.wfl} lds")
                issued[n] = issued.get(n, 0) + 1
            else:
                vmem(("rg", n), f"buffer_load_dwordx4 {vr(regs,4)}, v{v}, s[{S}:{S+3}], s{sSO} offen")
        block = xblock if kind == "x" else wblock
        def put(n):
            assert st["bar"] >= n - 3
            wait_for(lambda t: t == ("rg", n))
            r = staged.pop(n)
            va = vP + (n % 4 >> 1)
            for i in range(nshare):
                e(f"ds_write_b128 v{va}, {vr(r+4*i,4)} offset:{(n%2)*SLOT + 1024*i}")
            st["dsw"] = True
            issued[n] = issued.get(n, 0) + 1
        def w2setup():
            if st["w2"]: return
            st["w2"] = True
            lastso[0] = None
            p2ids()
            syncaddr(0)
            e("v_lshrrev_b32 v2, 3, v0")
            e("v_and_b32 v3, 7, v0")
            e("v_bfe_u32 v5, v0, 4, 1")
            e("v_lshlrev_b32 v5, 2, v5")
            e("v_xor_b32 v5, v5, v3")
            e("v_lshlrev_b32 v5, 4, v5")
            e("v_lshl_add_u32 v5, v2, 10, v5")
            e(f"s_lshl_b32 s{sT0}, s{sNBLK}, 7")
            e(f"v_add_u32 v{vW2}, s{sT0}, v5")
            srd(SW2, 10, 1409024)
            srd(SDBG, 14, 256)
            srd(SH, 16, WSB)
            e(f"s_lshl_b32 s{sT0}, s{sLW}, 13")
            e(f"s_mul_i32 s{sT1}, {sROT}, {ROT*16*1024}")
            e(f"s_add_u32 s{sW2O+4}, s{sT0}, s{sT1}")
            e(f"s_mul_i32 s{sT2}, s{sR4}, {688*1024}")
            e(f"s_sub_u32 s{sT3}, {688*1024}, s{sT2}")
            e(f"s_add_u32 s{sT1}, s{sW2O+4}, {NOV*16*1024}")
            e(f"s_add_u32 s{sW2O}, s{sT1}, s{sT2}")
            e(f"s_add_u32 s{sW2O+1}, s{sT1}, s{sT3}")
            e(f"s_cmp_eq_u32 {sROT}, 0")
            e(f"s_cselect_b32 s{sT1}, {(NOV+NC1)*16*1024}, 0")
            e(f"s_add_u32 s{sT1}, s{sT1}, s{sT0}")
            e(f"s_add_u32 s{sW2O+2}, s{sT1}, s{sT2}")
            e(f"s_add_u32 s{sW2O+3}, s{sT1}, s{sT3}")
            e(f"s_lshl_b32 s{sW2L}, s{sLW}, 10")
        def w2(c, part):
            w2setup()
            lastso[0] = None
            row0, rows, base, lvl = W2P[c]
            assert st["bar"] >= lvl
            npc = rows // 8
            qs = list(range((npc + 3) // 4))
            if part == "a": qs = qs[:5]
            if part == "b": qs = qs[5:]
            lv = 8 if c < 2 else 9
            for q in qs:
                skip = None
                if 4*q + 3 >= npc:
                    e(f"s_cmp_lt_u32 s{sLW}, {npc - 4*q}")
                    e(f"s_cselect_b32 s{sT0}, 0, {4096}")
                    e(f"s_add_u32 m0, s{sW2L}, {base + 4096*q}")
                    e(f"s_sub_u32 m0, m0, s{sT0}")
                    e(f"s_lshl_b32 s{sT0}, s{sT0}, 3")
                    e(f"s_add_u32 s{sSO}, s{sW2O+c}, {32*q*1024}")
                    e(f"s_sub_u32 s{sSO}, s{sSO}, s{sT0}")
                else:
                    e(f"s_add_u32 m0, s{sW2L}, {base + 4096*q}")
                    e(f"s_add_u32 s{sSO}, s{sW2O+c}, {32*q*1024}")
                vmem(("st", lv), f"buffer_load_dwordx4 v{vW2}, s[{SW2}:{SW2+3}], s{sSO} offen lds")
            if part != "a":
                issued[lv] = issued.get(lv, 0) + 1
        for tok in sched:
            m = re.fullmatch(r"([A-Z])(\d*)([abcd]?)", tok)
            t, n, h = m.group(1), int(m.group(2)) if m.group(2) else None, m.group(3)
            if t == "X" and n is None and not st.get("x"):
                st["x"] = True
                finish[kind]()
                lastso[0] = None
            elif t == "A":
                if stamps:
                    nst[0] = st["nstamp"]; stamp(); st["nstamp"] = nst[0]
            elif t == "V":
                e(f"s_waitcnt vmcnt({n})")
            elif t == "H":
                st["thr"] = n * (2 if kind == "x" and h == "a" else 1)
            elif t == "K":
                if st["k"] == 0:
                    kbase(4*o.kc, kper)
                for i in range(n):
                    if st["k"] < kper:
                        e(f"s_load_dwordx2 s[100:101], s[88:89], {128*st['k'] + 60}")
                        st["k"] += 1
            elif t == "S":
                block(n, 0)
            elif t == "G":
                r = vSTG + 16*n
                staged[n] = r
                block(n, 0, r)
            elif t in "RDTU":
                js = {"R": list(range(1, nblk)), "D": [0, 1], "T": list(range(2, nblk)), "U": list(range(nblk))}[t]
                half = (len(js) + 1) // 2
                if h == "a": js = js[:half]
                if h == "b": js = js[half:]
                for j in js:
                    block(n, j)
            elif t == "P":
                put(n)
            elif t == "L":
                assert st["sig"] == n
                land(n)
                lst()
                st["sig"] = n + 1
            elif t == "Q" and o.nolsig:
                pass
            elif t == "Q":
                e(f"ds_read_b128 {vr(vF,4)}, v{vFL} offset:16")
                st["pre"] = 1
            elif t == "B":
                assert st["bar"] == n - 1
                if n <= 7:
                    assert complete(n), (n, issued)
                    wait_for(lambda t: t == ("st", n))
                if st["dsw"]:
                    e("s_waitcnt lgkmcnt(0)"); st["dsw"] = False
                lst()
                e("s_barrier")
                lst()
                st["bar"] = n
            elif t == "C":
                need_cons(n)
            elif t == "W":
                w2(n, h)
            elif t == "O":
                w2setup()
                lastso[0] = None
                for q in range(4):
                    assert st["bar"] >= 5
                    e(f"s_add_u32 m0, s{sW2L}, {4096*q}")
                    e(f"s_add_u32 s{sSO}, s{sW2O+4}, {((q >> 1)*688 + (q & 1)*32)*1024}")
                    vmem(("st", o.ovstage), f"buffer_load_dwordx4 v{vW2}, s[{SW2}:{SW2+3}], s{sSO} offen lds")
                issued[o.ovstage] = issued.get(o.ovstage, 0) + 1
            elif t == "M":
                if kind == "x":
                    per = (43 + o.mparts - 1) // o.mparts
                    if not st.get("m"):
                        st["m"] = True
                        srd(SW2, 10, 1409024)
                        e(f"v_lshlrev_b32 v30, 7, v0")
                        e(f"s_mul_i32 s{sPRE}, s2, {43*128}")
                    e(f"s_add_u32 s{sSO}, s{sPRE}, {n*per*128}")
                    e(f"s_mov_b64 exec, {(1 << per) - 1}" if per <= 32 else f"s_mov_b32 exec_hi, {(1 << (per - 32)) - 1}")
                    vmem(("m",), f"buffer_load_dword v31, v30, s[{SW2}:{SW2+3}], s{sSO} offen")
                    e("s_mov_b64 exec, -1")
            elif t == "Y":
                w2setup()
                lastso[0] = None
                ysp = [int(x) for x in o.ysplit.split(",")]
                q0 = sum(ysp[:n])
                for q in range(q0, q0 + ysp[n]):
                    e(f"s_add_u32 s{sSO}, s{sW2O+2}, {32*q*1024}")
                    vmem(("y",), f"buffer_load_dwordx4 {vr(vYS+4*q,4)}, v{vW2}, s[{SW2}:{SW2+3}], s{sSO} offen")
                    st.setdefault("y", []).append(q)
            elif t == "E":
                w2setup()
                lastso[0] = None
                if kind == "w":
                    e(f"s_mul_i32 s{sT0}, s{sR4}, 688")
                    e(f"s_mul_i32 s{sT1}, s{sHALF}, 24")
                    e(f"s_add_u32 s{sT0}, s{sT0}, s{sT1}")
                    e(f"s_lshl_b32 s{sT1}, s{sLW}, 3")
                    e(f"s_add_u32 s{sT0}, s{sT0}, s{sT1}")
                    e(f"s_add_u32 s{sT0}, s{sT0}, 320")
                    e(f"s_lshl_b32 s{sSO}, s{sT0}, 10")
                    vmem(("e",), f"buffer_load_dwordx4 v[32:35], v{vW2}, s[{SW2}:{SW2+3}], s{sSO} offen")
            elif t == "X":
                assert st["bar"] >= 8
                wait_for(lambda t: t == ("y",))
                base = W2P[2][2]
                e(f"v_lshlrev_b32 v6, 4, v0")
                e(f"s_add_u32 s{sT0}, s{sW2L}, {base}")
                e(f"v_add_u32 v6, s{sT0}, v6")
                for q in ylist:
                    e(f"ds_write_b128 v6, {vr(vYS+4*q,4)} offset:{4096*q}")
                st["dsw"] = True
                for q in range(10):
                    if q not in ylist:
                        e(f"s_add_u32 m0, s{sW2L}, {base + 4096*q}")
                        e(f"s_add_u32 s{sSO}, s{sW2O+2}, {32*q*1024}")
                        vmem(("st", 9), f"buffer_load_dwordx4 v{vW2}, s[{SW2}:{SW2+3}], s{sSO} offen lds")
                issued[9] = issued.get(9, 0) + 1
            elif t == "N":
                w2setup()
                vmem(("nonce",), f"buffer_load_dwordx2 v[28:29], off, s[{SDBG}:{SDBG+3}], 0 sc1")
            elif t == "Z":
                poll()
            elif t == "J":
                assert not staged and st["bar"] >= 7 and not st["dsw"], st
                ylist[:] = st.get("y", [])
                if st["k"]: print("prefetched per loader:", st["k"], "of", kper, file=sys.stderr)
                if not last:
                    e("s_branch L_join")
                    join.append(([t for t in ops[st["done"]+1:]], st["cons"], st["pre"]))
                    return
                e.label("L_join")
                if o.lprio: e("s_setprio 0")
                mine = [t for t in ops[st["done"]+1:]]
                for j in join:
                    assert j[0] == mine and j[1] == st["cons"] and j[2] == st["pre"], (j, mine)
            else:
                raise ValueError(tok)
        assert st["sig"] == 10
        nst[0] = st["nstamp"]
    join = []
    ylist = []
    def poll():
        e(f"s_cmp_lg_u32 s{sLW}, 0")
        e("s_cbranch_scc1 L_nopoll")
        e(f"s_mul_i32 s{sT0}, s{sM64}, {o.fs1}")
        e(f"s_add_u32 s{sT0}, s{sT0}, {FLAGB}")
        e(f"v_mul_u32_u24 v5, {o.fs2}, v0")
        e(f"v_mov_b32 v6, 1")
        e(f"s_mov_b32 s{sCNT}, 0")
        e("s_mov_b64 exec, 0xffffffff")
        if o.psleep:
            e("s_branch L_poll0")
        e.label("L_poll")
        if o.psleep:
            e(f"s_sleep {o.psleep}")
            e.label("L_poll0")
        if o.pollfl == "atomic":
            e("v_mov_b64 v[24:25], 0")
            e(f"buffer_atomic_or_x2 v[24:25], v5, s[{SH}:{SH+3}], s{sT0} offen sc0 sc1")
        else:
            e(f"buffer_load_dwordx2 v[24:25], v5, s[{SH}:{SH+3}], s{sT0} offen {o.pollfl}")
        e(f"s_add_u32 s{sCNT}, s{sCNT}, 1")
        e("s_waitcnt vmcnt(0)")
        e(f"v_readfirstlane_b32 s{sT1}, v28")
        e("v_cmp_ne_u64 vcc, v[24:25], v[28:29]")
        e(f"s_cmp_ge_u32 s{sCNT}, {SPIN}")
        e("s_cbranch_scc1 L_polldone")
        e(f"s_cmp_eq_u32 s{sT1}, 0")
        e("s_cbranch_scc1 L_renonce")
        e("s_cbranch_vccz L_polldone")
        e(f"s_and_b32 s{sT1}, vcc_lo, 0x7fff")
        e("s_cbranch_scc1 L_poll1")
        e("s_mov_b64 exec, 1")
        e(f"ds_write_b32 v{vFL}, v6 offset:32")
        e("s_mov_b64 exec, 0xffffffff")
        e.label("L_poll1")
        e(f"s_and_b32 s{sT1}, vcc_lo, 0xffff8000")
        e("s_cbranch_scc1 L_poll")
        e("s_mov_b64 exec, 1")
        e(f"ds_write_b32 v{vFL}, v6 offset:36")
        e("s_mov_b64 exec, 0xffffffff")
        e("s_branch L_poll")
        e.label("L_renonce")
        e(f"buffer_load_dwordx2 v[28:29], off, s[{SDBG}:{SDBG+3}], 0 sc1")
        e("s_branch L_poll")
        e.label("L_polldone")
        e("s_mov_b64 exec, 1")
        e(f"ds_write2_b32 v{vFL}, v6, v6 offset0:8 offset1:9")
        e("s_mov_b64 exec, -1")
        if stamps: e(f"v_writelane_b32 v{STV}, s{sCNT}, 31")
        e.label("L_nopoll")

    finish = {}
    e(f"v_and_b32 v5, 255, v0")
    ids_w()
    e(f"v_mul_u32_u24 v6, 43691, v5")
    e(f"s_bfe_u32 s{sT3}, s{sUST}, 0x10001")
    e(f"v_lshrrev_b32 v6, 19, v6")
    e(f"s_bfe_u32 s{sN}, s2, 0x10005")
    e(f"v_mul_u32_u24 v7, 12, v6")
    e(f"s_lshr_b32 s{sT2}, s2, 6")
    e(f"v_xor_b32 v6, s{sT3}, v6")
    e(f"s_lshl_b32 s{sT3}, s{sUCNT}, 1")
    e(f"v_sub_u32 v7, v5, v7")
    e(f"s_lshl_b32 s{sT0}, s{sUST}, 5")
    e(f"v_mul_u32_u24 v6, {WROW}, v6")
    e(f"v_cmp_le_u32 vcc, s{sT3}, v7")
    e(f"s_mul_i32 s{sO}, s{sT2}, {16*WROW}")
    e(f"v_lshl_add_u32 v6, v7, 4, v6")
    e(f"s_add_u32 s{sO}, s{sO}, s{sT0}")
    e(f"v_bfrev_b32 v7, 2")
    e(f"s_mul_i32 s{sT1}, s{sN}, 12")
    e(f"s_add_u32 s{sT1}, s{sT1}, s{sLW}")
    e(f"v_cndmask_b32 v6, v6, v7, vcc")
    e(f"s_add_u32 s{sT1}, s{sT1}, {W1B >> 10}")
    e(f"s_lshl_b32 s{sT1}, s{sT1}, 10")
    e(f"s_lshl_b32 s{sT3}, s{sN}, 5")
    e(f"s_mul_i32 s{sLA}, s{sT2}, 3072")
    e(f"v_xor_b32 v{vWA}, s{sT3}, v6")
    e(f"s_add_u32 s{sLA}, s{sLA}, s{sT1}")
    e(f"s_mov_b32 s{SW1+2}, 1409024")
    e(f"s_mov_b32 s{SW1+3}, 0x20000")
    e(f"s_cmp_eq_u32 s{sN}, 0")
    e("s_waitcnt lgkmcnt(0)")
    e(f"s_cselect_b32 s{SW1}, s6, s8")
    e(f"s_cselect_b32 s{SW1+1}, s7, s9")
    def fin_w():
        e(f"s_cmp_eq_u32 s{sN}, 0")
        e(f"s_cselect_b32 s{SW3}, s8, s6")
        e(f"s_cselect_b32 s{SW3+1}, s9, s7")
        e(f"s_mov_b32 s{SW3+2}, 1409024")
        e(f"s_mov_b32 s{SW3+3}, 0x20000")
        e(f"s_mov_b32 s{sT3}, {-12288 & 0xffffffff}")
        e(f"s_cmov_b32 s{sT3}, 12288")
        e(f"v_xor_b32 v{vWB}, 32, v{vWA}")
        e(f"s_add_u32 s{sLB}, s{sLA}, s{sT3}")
        for k in range(1, 4):
            e(f"s_add_u32 s{sT2}, s{sT2}, 1")
            e(f"s_and_b32 s{sT2}, s{sT2}, 3")
            e(f"s_mul_i32 s{sO+k}, s{sT2}, {16*WROW}")
            e(f"s_add_u32 s{sO+k}, s{sO+k}, s{sT0}")
            e(f"s_mul_i32 s{sLA+k}, s{sT2}, 3072")
            e(f"s_add_u32 s{sLA+k}, s{sLA+k}, s{sT1}")
            e(f"s_add_u32 s{sLB+k}, s{sLA+k}, s{sT3}")
        e("v_and_b32 v0, 63, v0")
        if o.lprio and o.lprio0: e("s_setprio 0")
    finish["w"] = fin_w
    if stamps:
        e(f"v_writelane_b32 v{STV}, s90, 0")
    programs("w")

    xbeg = len(e.lines)
    e.label("L_xload")
    e("v_and_b32 v0, 63, v0")
    ids_m()
    e("v_lshrrev_b32 v2, 3, v0")
    e("v_and_b32 v3, 7, v0")
    e("v_lshrrev_b32 v4, 4, v0")
    e(f"v_xor_b32 v5, v4, v3")
    e(f"v_lshlrev_b32 v5, 4, v5")
    e(f"v_lshl_add_u32 v{vX}, v2, 10, v5")
    e(f"v_xor_b32 v5, 64, v{vX}")
    e(f"v_add_u32 v{vX+1}, {7168}, v5")
    e(f"v_add_u32 v{vX+2}, {2*7168}, v{vX}")
    e(f"v_add_u32 v{vX+3}, {3*7168}, v5")
    e(f"s_lshl_b32 s{sT0}, s{sMBLK}, 17")
    e(f"s_lshl_b32 s{sLA}, s{sT1}, 12")
    e(f"s_lshl3_add_u32 s{sO}, s{sLA}, s{sT0}")
    e(f"s_mov_b32 s{SX+2}, 2097152")
    e(f"s_mov_b32 s{SX+3}, 0x20000")
    e("s_waitcnt lgkmcnt(0)")
    e(f"s_mov_b64 s[{SX}:{SX+1}], s[4:5]")
    def fin_x():
        if o.xtop:
            e("s_branch L_xrest")
            head = e.lines[xbeg:]
            del e.lines[xbeg:]
            e.lines[xtop_at:xtop_at] = head
            e.label("L_xrest")
        for j in range(1, 4):
            e(f"s_add_u32 s{sT1}, s{sT1}, 1")
            e(f"s_and_b32 s{sT1}, s{sT1}, 3")
            e(f"s_lshl_b32 s{sLA+j}, s{sT1}, 12")
            e(f"s_lshl3_add_u32 s{sO+j}, s{sLA+j}, s{sT0}")
        if o.xdelay: e(f"s_sleep {o.xdelay}")
        if o.lprio and o.lprio0: e("s_setprio 0")
    finish["x"] = fin_x
    if stamps:
        e(f"v_writelane_b32 v{STV}, s90, 0")
    programs("x")
    stamp()
    if stamps:
        e(f"s_cmp_lg_u32 s{sLW}, {o.stampw}")
        e("s_cbranch_scc1 L_end")
        stamp_out(0x900000)
    e("s_endpgm")

    e.label("L_compute")
    e("s_waitcnt lgkmcnt(0)")
    if o.cdelay: e(f"s_sleep {o.cdelay}")
    e("v_and_b32 v0, 63, v0")
    ids()
    ids_w()
    ids_m()
    syncaddr(16)
    if o.kmall:
        e(f"s_lshl_b32 s88, s2, 2")
        e(f"s_add_u32 s88, s88, s{sLW}")
        e(f"s_mul_i32 s88, s88, 11")
        e(f"s_min_u32 s88, s88, {11008 - 11}")
        e(f"s_lshl_b32 s88, s88, 7")
        e(f"s_add_u32 s88, s10, s88")
        e(f"s_addc_u32 s89, s11, 0")
        for i in range(7):
            e(f"s_load_dwordx2 s[100:101], s[88:89], {128*i + 60}")
    if o.cpf and not o.cpf0:
        e(f"s_cmp_lg_u32 s{sLW}, 0")
        e("s_cbranch_scc1 L_nocpf")
        e("s_getpc_b64 s[84:85]")
        e.label("L_pc")
        e(f"s_sub_u32 s84, s84, L_pc-{NAME}_kernel")
        e("s_subb_u32 s85, s85, 0")
        e("s_lshr_b32 s86, s2, 3")
        e("s_lshl_b32 s86, s86, 9")
        e("v_lshlrev_b32 v2, 7, v0")
        e("v_add_u32 v2, s86, v2")
        e(f"v_min_u32 v2, L_codeend-{NAME}_kernel-4, v2")
        e("s_mov_b64 exec, 15")
        e("global_load_dword v238, v2, s[84:85]")
        e("s_mov_b64 exec, -1")
        e.label("L_nocpf")
    p2ids()
    ACC = 0
    FR = [96, 116, 136, 156]
    OV = 192
    vXA = 240
    vA0, vA1 = 244, 245
    vL16 = 246
    vB = 247
    vT = 248
    vNC = 254
    vOUT = 236
    sWR, sWC = 69, 70
    sSLOTB, sH0, sH1, sNV, sHB, sEX, sOUTO, sTG = range(71, 79)
    sK = 82
    e(f"s_and_b32 s{sWR}, s{sLW}, 1")
    e(f"s_lshr_b32 s{sWC}, s{sLW}, 1")
    e(f"v_and_b32 v{vT}, 31, v0")
    e(f"v_lshrrev_b32 v{vT+1}, 5, v0")
    e(f"v_bfe_u32 v{vT+2}, v0, 1, 3")
    e(f"v_xor_b32 v{vT+2}, v{vT+2}, v{vT+1}")
    e(f"s_lshl_b32 s{sT0}, s{sWR}, 13")
    e(f"v_lshlrev_b32 v{vT}, 7, v{vT}")
    e(f"v_add_u32 v{vT}, s{sT0}, v{vT}")
    for t in range(4):
        e(f"v_xor_b32 v{vT+3}, {2*t}, v{vT+2}")
        e(f"v_lshl_add_u32 v{vXA+t}, v{vT+3}, 4, v{vT}")
    e(f"v_bfe_u32 v{vT}, v0, 2, 2")
    e(f"s_bfe_u32 s{sT0}, s{sUST}, 0x10001")
    e(f"v_xor_b32 v{vT}, s{sT0}, v{vT}")
    e(f"v_lshl_add_u32 v{vT}, v{vT+1}, 3, v{vT}")
    e(f"v_mul_u32_u24 v{vT}, 192, v{vT}")
    e(f"v_and_b32 v{vT+2}, 3, v0")
    e(f"v_lshl_add_u32 v{vT}, v{vT+2}, 3, v{vT}")
    e(f"s_mul_i32 s{sT0}, s{sWC}, 96")
    e(f"s_add_u32 s{sT0}, s{sT0}, {W1B}")
    e(f"v_add_u32 v{vT}, s{sT0}, v{vT}")
    e(f"v_bfe_u32 v{vT+2}, v0, 4, 1")
    e(f"s_cmp_eq_u32 s{sWC}, 0")
    csel(sT0, 12288+32, 12288-32)
    csel(sT1, 12288-32, 12288+32)
    e(f"v_mul_lo_u32 v{vT+3}, v{vT+2}, s{sT0}")
    e(f"v_add_u32 v{vA0}, v{vT}, v{vT+3}")
    e(f"v_mul_lo_u32 v{vT+3}, v{vT+2}, s{sT1}")
    e(f"v_add_u32 v{vA1}, v{vT}, v{vT+3}")
    e(f"v_lshlrev_b32 v{vL16}, 4, v0")
    e(f"v_bfe_u32 v{vT}, v0, 2, 2")
    e(f"v_lshl_add_u32 v{vT}, v{vT+1}, 2, v{vT}")
    e(f"v_lshlrev_b32 v{vT}, 7, v{vT}")
    e(f"v_bfe_u32 v{vT+2}, v0, 4, 1")
    e(f"v_lshl_add_u32 v{vT}, v{vT+2}, 5, v{vT}")
    e(f"v_and_b32 v{vT+2}, 3, v0")
    e(f"v_lshl_add_u32 v{vT}, v{vT+2}, 3, v{vT}")
    e(f"v_bfe_u32 v{vT+2}, v0, 3, 1")
    e(f"v_lshl_add_u32 v{vB}, v{vT+2}, 6, v{vT}")
    e(f"s_lshl_b32 s{sT0}, s{sWC}, 6")
    e(f"v_xor_b32 v{vB}, s{sT0}, v{vB}")
    e(f"v_and_b32 v{vOUT}, 31, v0")
    e(f"v_lshlrev_b32 v{vOUT}, 10, v{vOUT}")
    e(f"v_lshl_add_u32 v{vOUT}, v{vT+1}, 4, v{vOUT}")
    e(f"s_lshl_b32 s{sOUTO}, s{sM64}, 1")
    e(f"s_add_u32 s{sOUTO}, s{sOUTO}, s{sWR}")
    e(f"s_mul_i32 s{sHB}, s{sOUTO}, 86")
    e(f"s_lshl_b32 s{sOUTO}, s{sOUTO}, 15")
    e(f"s_lshl_b32 s{sT1}, s{sNBLK}, 7")
    e(f"s_add_u32 s{sOUTO}, s{sOUTO}, s{sT1}")
    e(f"s_add_u32 s{sOUTO}, s{sOUTO}, s{sT0}")
    e(f"s_mul_i32 s{sT1}, s{sWC}, 43")
    e(f"s_add_u32 s{sHB}, s{sHB}, s{sT1}")
    e(f"s_cmp_eq_u32 {sROT}, 0")
    e(f"s_cselect_b32 s{sTG}, {NOV+NC1}, 0")
    e(f"s_add_u32 s{sTG}, s{sTG}, s{sHB}")
    e(f"s_lshl_b32 s{sTG}, s{sTG}, 10")
    e(f"s_mul_i32 s{sT1}, {sROT}, {ROT}")
    e(f"s_add_u32 s{sHB}, s{sHB}, s{sT1}")
    e(f"s_lshl_b32 s{sHB}, s{sHB}, 10")
    e(f"s_lshl_b32 s{sH0}, s{sMBLK}, 1")
    e(f"s_add_u32 s{sH0}, s{sH0}, s{sWR}")
    e(f"s_mul_i32 s{sEX}, s{sH0}, {o.fs1}")
    e(f"s_lshl_b32 s{sT3}, s{sSLICE}, 1")
    e(f"s_add_u32 s{sT3}, s{sT3}, s{sWC}")
    e(f"s_mul_i32 s{sT3}, s{sT3}, {o.fs2}")
    e(f"s_add_u32 s{sEX}, s{sEX}, s{sT3}")
    e(f"s_add_u32 s{sEX}, s{sEX}, {FLAGB}")
    e(f"s_mul_i32 s{sH0}, s{sH0}, {2*86}")
    e(f"s_add_u32 s{sH0}, s{sH0}, s{sUST}")
    e(f"s_mul_i32 s{sT1}, s{sWC}, 3")
    e(f"s_add_u32 s{sH0}, s{sH0}, s{sT1}")
    e(f"s_lshl_b32 s{sH0}, s{sH0}, 10")
    e(f"s_add_u32 s{sH1}, s{sH0}, {86*1024}")
    e(f"s_sub_u32 s{sNV}, s{sUCNT}, s{sT1}")
    e(f"s_mov_b32 s{sK}, 0xbfb8aa3b")
    e(f"s_mov_b32 s{sK+1}, 0xbfb8aa3b")
    vO0, vO1 = 248, 249
    e(f"s_lshl_b32 s{sT0}, s{sWC}, 13")
    e(f"v_add_u32 v{vO0}, s{sT0}, v{vB}")
    e(f"v_xor_b32 v{vO1}, 64, v{vO0}")
    srd(SH, 16, WSB)
    srd(SOUT, 12, 2097152)
    srd(SDBG, 14, 256)
    e(f"s_or_b32 s{sT0}, s2, s{sLW}")
    e(f"s_cbranch_scc1 L_nopub")
    e("s_memrealtime s[84:85]")
    e("s_waitcnt lgkmcnt(0)")
    e("s_or_b32 s84, s84, 1")
    e("v_mov_b32 v2, s84")
    e("v_mov_b32 v3, s85")
    e("s_mov_b64 exec, 1")
    e(f"buffer_store_dwordx2 v[2:3], off, s[{SDBG}:{SDBG+3}], 0 sc1")
    e("s_mov_b64 exec, -1")
    e("s_nop 1")
    e.label("L_nopub")
    if stamps:
        e(f"v_writelane_b32 v{STV}, s90, 0")
        nst[0] = 1
    for r in range(0, 96, 2):
        e(f"v_mov_b64 {vr(ACC+r,2)}, 0")
    if o.prewr:
        e(f"v_lshrrev_b32 v{vF}, 1, v{vL16}")
        e("s_mov_b64 exec, 0xffff")
        e(f"buffer_store_dwordx2 v[0:1], v{vF}, s[{SH}:{SH+3}], s{sEX} offen sc1")
        e("s_mov_b64 exec, -1")
    if o.kov:
        e(f"s_mul_i32 s88, s{sWC}, 688")
        e(f"s_mul_i32 s89, s{sWR}, {ROT*16}")
        e(f"s_add_u32 s88, s88, s89")
        e(f"s_lshr_b32 s89, s2, 3")
        e(f"s_lshl_b32 s89, s89, 1")
        e(f"s_add_u32 s88, s88, s89")
        e(f"s_lshl_b32 s88, s88, 10")
        e(f"s_add_u32 s88, s10, s88")
        e(f"s_addc_u32 s89, s11, 0")
        for i in range(16):
            e(f"s_load_dwordx2 s[100:101], s[88:89], {128*i + 60}")
    if o.kmall:
        for i in range(7, 11):
            e(f"s_load_dwordx2 s[100:101], s[88:89], {128*i + 60}")
    e(f"s_mov_b32 s{sN}, 0")
    e(f"s_mov_b32 s{sSLOTB}, 0")
    if o.istamp: e("s_mov_b32 s97, 0")

    def reads(t):
        f = FR[t]
        L = [f"ds_read_b128 {vr(f,4)}, v{vXA+t}"]
        def w(uj):
            a = vA1 if uj == 1 else vA0
            for rd in range(2):
                L.append(f"ds_read_b64_tr_b16 {vr(f+8+4*uj+2*rd,2)}, v{a} offset:{uj*32 + (16*t+4*rd)*192}")
        w(0)
        L.append(f"ds_read_b128 {vr(f+4,4)}, v{vXA+t} offset:4096")
        w(1); w(2)
        return L
    def mf(k, st):
        uj, mi = k // 2, k % 2
        f = FR[st]
        a = ACC + 16*(mi*3+uj)
        if not o.nomfma:
            e(f"v_mfma_f32_32x32x16_bf16 {vr(a,16)}, {vr(f+8+4*uj,4)}, {vr(f+4*mi,4)}, {vr(a,16)}")

    if o.kov or o.kmall: e("s_waitcnt lgkmcnt(0)")
    if o.cprio: e(f"s_setprio {o.cprio}")
    e("s_barrier")
    stamp()
    for s in reads(0): e(s)
    e("s_waitcnt lgkmcnt(1)")
    for s in reads(1): e(s)
    e.label("L_p1")
    for t in range(4):
        R = reads((t+2) & 3)
        e("s_waitcnt lgkmcnt(8)")
        if t == 2:
            mf(0, t)
            e(f"s_add_u32 s{sN}, s{sN}, 1")
            e(f"s_and_b32 s{sSLOTB}, s{sN}, 3")
            csel(sT0, SLOT, (-3*SLOT) & 0xffffffff)
            e(f"v_add_u32 v{vXA}, s{sT0}, v{vXA}")
            e(f"v_add_u32 v{vA0}, s{sT0}, v{vA0}")
            e(f"v_add_u32 v{vA1}, s{sT0}, v{vA1}")
            mf(1, t)
            e("s_waitcnt lgkmcnt(0)")
            e("s_barrier")
            for k in range(2, 6):
                mf(k, t)
                for s in R[2*k-4:2*k-2]: e(s)
            for tt in range(1, 4):
                e(f"v_add_u32 v{vXA+tt}, s{sT0}, v{vXA+tt}")
        else:
            for k in range(6):
                mf(k, t)
                for s in R[2*k:2*k+2]: e(s)
                if t == 3 and k == 4:
                    e(f"s_cmp_ge_u32 s{sN}, 6")
                    e("s_cbranch_scc1 L_p1_x")
                    e.label("L_p1_ovback")
                    e(f"s_cmp_lt_u32 s{sN}, 8")
    e("s_cbranch_scc1 L_p1")
    e("s_branch L_p1_done")
    e.label("L_p1_x")
    e(f"s_cmp_eq_u32 s{sN}, 7")
    e("s_cbranch_scc1 L_p1_ov")
    e(f"s_cmp_eq_u32 s{sN}, 8")
    e("s_cbranch_scc1 L_p1_ovback")
    e(f"buffer_load_dwordx2 {vr(vNC,2)}, off, s[{SDBG}:{SDBG+3}], 0 sc1")
    e(f"s_lshl_b32 s{sT1}, s{sLW}, 4")
    e(f"v_mov_b64 {vr(vF,2)}, 0")
    e(f"v_mov_b64 {vr(vF+2,2)}, 0")
    e(f"v_add_u32 v{vSG}, s{sT1}, v{vFL}")
    e("s_mov_b64 exec, 1")
    e(f"ds_write_b128 v{vSG}, {vr(vF,4)}")
    e("s_mov_b64 exec, -1")
    e("s_branch L_p1_ovback")
    e.label("L_p1_ov")
    e("s_waitcnt lgkmcnt(0)")
    for u in range(NOV):
        for dj in range(2):
            for rd in range(2):
                e(f"ds_read_b64_tr_b16 {vr(OV+8*u+4*dj+2*rd,2)}, v{(vO0, vO1)[dj]} offset:{u*2048+1024*rd}")
        if u == 1: e("s_waitcnt lgkmcnt(4)")
    e("s_branch L_p1_ovback")
    e.label("L_p1_done")
    e.drain()
    stamp()
    e(f"s_mov_b32 s{sN}, 0")
    e.label("L_nonce")
    e("s_waitcnt vmcnt(0)")
    e(f"v_readfirstlane_b32 s{sT0}, v{vNC}")
    e(f"s_add_u32 s{sN}, s{sN}, 1")
    e(f"s_cmp_lg_u32 s{sT0}, 0")
    e("s_cbranch_scc1 L_nonce_ok")
    e(f"s_cmp_ge_u32 s{sN}, {SPIN}")
    e("s_cbranch_scc1 L_nonce_ok")
    e(f"buffer_load_dwordx2 {vr(vNC,2)}, off, s[{SDBG}:{SDBG+3}], 0 sc1")
    e("s_branch L_nonce")
    e.label("L_nonce_ok")
    e("s_nop 7")
    T = 96
    for uj in range(3):
        if uj == 1:
            e(f"s_cmp_lt_u32 s{sNV}, 2")
            e("s_cbranch_scc1 L_epi_done")
        for mi in range(2):
            a = ACC + 16*(mi*3+uj)
            tt = T + 8*mi
            for r in range(0, 8, 2):
                e(f"v_pk_mul_f32 {vr(tt+r,2)}, {vr(a+r,2)}, s[{sK}:{sK+1}]")
            for r in range(8):
                e(f"v_exp_f32 v{tt+r}, v{tt+r}")
            for r in range(0, 8, 2):
                e(f"v_pk_mul_f32 {vr(a+r,2)}, {vr(a+r,2)}, {vr(a+8+r,2)}")
            for r in range(0, 8, 2):
                e(f"v_pk_add_f32 {vr(tt+r,2)}, {vr(tt+r,2)}, 1.0 op_sel_hi:[1,0]")
            for r in range(8):
                e(f"v_rcp_f32 v{tt+r}, v{tt+r}")
            e("s_nop 0")
            for r in range(0, 8, 2):
                e(f"v_pk_mul_f32 {vr(a+r,2)}, {vr(a+r,2)}, {vr(tt+r,2)}")
            for r in range(4):
                e(f"v_cvt_pk_bf16_f32 v{a+8+r}, v{a+2*r}, v{a+2*r+1}")
            so = sH0 if mi == 0 else sH1
            e(f"buffer_store_dwordx4 {vr(a+8,4)}, v{vL16}, s[{SH}:{SH+3}], s{so} offen offset:{1024*uj} sc1")
    e.label("L_epi_done")
    signal(9)
    stamp()
    HR, NH = 0, 32
    AC2 = 128
    WB = 160
    NB = 4
    vC1 = [240, 241]; vC2 = [242, 243]
    vEW, vER, vGO = 244, 245, 250
    e(f"s_cmp_eq_u32 s{sWC}, s{sR4}")
    csel(sT0, SLOT, 2*SLOT)
    csel(sT1, 2*SLOT, SLOT)
    csel(sT2, 3*SLOT, 0)
    e(f"v_add_u32 v{vC1[0]}, s{sT0}, v{vB}")
    e(f"v_add_u32 v{vC2[0]}, s{sT2}, v{vB}")
    e(f"v_xor_b32 v{vC1[1]}, 64, v{vC1[0]}")
    e(f"v_xor_b32 v{vC2[1]}, 64, v{vC2[0]}")
    e(f"s_lshl_b32 s{sT2}, s{sWR}, 12")
    e(f"s_add_u32 s{sT0}, s{sT0}, s{sT2}")
    e(f"s_add_u32 s{sT1}, s{sT1}, s{sT2}")
    e(f"v_add_u32 v{vEW}, s{sT0}, v{vL16}")
    e(f"v_add_u32 v{vER}, s{sT1}, v{vL16}")
    e(f"s_lshl_b32 s{sT2}, s{sWC}, 2")
    e(f"v_add_u32 v{vGO}, s{sT2}, v{vFL}")
    if o.fullflag: e(f"v_lshrrev_b32 v{vF}, 1, v{vL16}")
    e("s_mov_b64 exec, 1")
    e("s_waitcnt vmcnt(0)")
    if o.fullflag:
        e("s_mov_b64 exec, 0xffff")
        e(f"buffer_store_dwordx2 {vr(vNC,2)}, v{vF}, s[{SH}:{SH+3}], s{sEX} offen sc1")
    else:
        e(f"buffer_store_dwordx2 {vr(vNC,2)}, off, s[{SH}:{SH+3}], s{sEX} sc1")
    signal(10)
    stamp()
    e(f"s_mov_b32 s{sCNT}, 0")
    e.label("L_go")
    e(f"ds_read_b32 v{vF}, v{vGO} offset:32")
    e(f"s_add_u32 s{sCNT}, s{sCNT}, 1")
    e("s_waitcnt lgkmcnt(0)")
    e(f"v_readfirstlane_b32 s{sT3}, v{vF}")
    e(f"s_cmp_lg_u32 s{sT3}, 0")
    e("s_cbranch_scc1 L_gone")
    e(f"s_cmp_lt_u32 s{sCNT}, {4*SPIN}")
    e("s_cbranch_scc1 L_go")
    e.label("L_gone")
    stamp()
    def w2regs(uu):
        return OV + 8*uu if uu < NOV else WB + 8*(uu % NB)
    def w2reads(uu):
        if uu < NOV: return []
        b = w2regs(uu)
        A, k = (vC1, uu - NOV) if uu < NOV + NC1 else (vC2, uu - NOV - NC1)
        L = []
        for dj in (1, 0):
            for rd in range(2):
                L.append((f"u{uu}_{dj}{rd}", f"ds_read_b64_tr_b16 {vr(b+4*dj+2*rd,2)}, v{A[dj]} offset:{k*2048+1024*rd}"))
        return L
    def hload(uu):
        so, k = (sHB, uu) if uu < NOV + NC1 else (sTG, uu - NOV - NC1)
        e(f"buffer_load_dwordx4 {vr(HR+4*(uu%NH),4)}, v{vL16}, s[{SH}:{SH+3}], s{so} offen offset:{1024*(k%4)} sc1")
        if k % 4 == 3:
            e(f"s_add_u32 s{so}, s{so}, 4096")
    PD = o.pd
    assert PD < NH
    for i in range(PD):
        hload(i)
    issued = PD
    spin4(0, 9, sleep=0)
    stamp()
    slow = []
    for uu in range(43):
        R = w2reads(uu+3) if uu + 3 < 43 else []
        b = w2regs(uu)
        e(f"s_waitcnt vmcnt({issued - uu - 1})")
        for q, dj in enumerate((1, 0)):
            e.need(f"u{uu}_{dj}0", f"u{uu}_{dj}1")
            a = AC2 + 16*dj
            c = "0" if uu == 0 else vr(a, 16)
            e(f"v_mfma_f32_32x32x16_bf16 {vr(a,16)}, {vr(b+4*dj,4)}, {vr(HR+4*(uu%NH),4)}, {c}")
            for tag, s in R[2*q:2*q+2]:
                e.lds(tag, s)
        if issued < 43:
            hload(issued); issued += 1
        def check(name, off, target, at):
            if uu == at - 2:
                e.lds(name, f"ds_read_b128 {vr(vF,4)}, v{vFL} offset:{off}")
            if uu == at:
                e.need(name)
                min4(sT3)
                e(f"s_cmp_ge_u32 s{sT3}, {target}")
                e(f"s_cbranch_scc0 L_{name}_wait")
                e.label(f"L_{name}_go")
                slow.append((name, off, target))
        check("c2", 0, 10, NOV + NC1 - 4)
        if uu == NOV + NC1:
            e(f"v_mov_b32 v{vSG}, 11")
            e("s_mov_b64 exec, 1")
            e.lds("sig", f"ds_write_b32 v{vMY}, v{vSG}")
            e("s_mov_b64 exec, -1")
        check("ex", 16, 11, 41)
    stamp()
    e("s_nop 10")
    for j in range(4):
        e(f"ds_write_b128 v{vEW}, {vr(AC2+16+4*j,4)} offset:{1024*j}")
    e("s_waitcnt lgkmcnt(0)")
    e("s_barrier")
    for j in range(4):
        e(f"ds_read_b128 {vr(64+4*j,4)}, v{vER} offset:{1024*j}")
    for j in range(4):
        e(f"s_waitcnt lgkmcnt({3-j})")
        for r in range(4*j, 4*j+4, 2):
            e(f"v_pk_add_f32 {vr(AC2+r,2)}, {vr(AC2+r,2)}, {vr(64+r,2)}")
        for r in range(2*j, 2*j+2):
            e(f"v_cvt_pk_bf16_f32 v{80+r}, v{AC2+2*r}, v{AC2+2*r+1}")
        if j & 1:
            e("s_nop 1")
            e(f"v_permlane32_swap_b32 v{78+2*j}, v{80+2*j}")
            e(f"v_permlane32_swap_b32 v{79+2*j}, v{81+2*j}")
            e(f"buffer_store_dwordx4 {vr(78+2*j,4)}, v{vOUT}, s[{SOUT}:{SOUT+3}], s{sOUTO} offen offset:{16*(j-1)}")
    if stamps:
        stamp()
        e("s_waitcnt vmcnt(0)")
        stamp()
        e(f"s_cmp_lg_u32 s{sLW}, 0")
        e("s_cbranch_scc1 L_end")
        stamp_out(0x800000)
    e.label("L_end")
    e("s_endpgm")
    for name, off, target in slow:
        e.label(f"L_{name}_wait")
        spin4(off, target, sleep=0)
        e(f"s_branch L_{name}_go")
    e.label("L_codeend")

    head = f"""; Fused SwiGLU MLP: out = (silu(x@w1) * (x@w3)) @ w2   (bf16, M=2048 D=512 F=1376)
; @launch grid=(256,1,1) block=(512,1,1) lds=163840
.amdgcn_target "amdgcn-amd-amdhsa--gfx950"
.text
.globl {NAME}_kernel
.p2align 8
.type {NAME}_kernel,@function
{NAME}_kernel:
"""
    tail = f""".section .rodata,"a"
.p2align 6
.amdhsa_kernel {NAME}_kernel
  .amdhsa_next_free_vgpr 256
  .amdhsa_next_free_sgpr 102
  .amdhsa_accum_offset 256
  .amdhsa_group_segment_fixed_size 0
  .amdhsa_kernarg_size 56
  .amdhsa_user_sgpr_count 2
  .amdhsa_user_sgpr_kernarg_segment_ptr 1
  .amdhsa_system_sgpr_workgroup_id_x 1
.end_amdhsa_kernel
"""
    return head + e.text() + tail

DEF = "S0 S1 X R0 R1 B0 M0 S2 S3 R2a B1 R2b R3 B2 M1 S4 S5 R4a B3 R4b R5 B4 M2 S6 S7 R6a B5 R6b R7 N B6 O W0a B7"

if __name__ == "__main__":
    ap = argparse.ArgumentParser()
    ap.add_argument("-o", default="/dev/stdout")
    for f in ("stamps", "nomfma", "nols", "cpf", "recheck", "nosig", "early", "istamp", "nochk", "nolsig", "norot", "kov", "kmall", "fullflag", "nora", "prewr", "ldfirst", "lprio0", "cpf0", "xtop"):
        ap.add_argument("--" + f, action="store_true")
    ap.add_argument("--fs1", type=int, default=4096)
    ap.add_argument("--fs2", type=int, default=128)
    ap.add_argument("--pd", type=int, default=12)
    ap.add_argument("--kc", type=int, default=0)
    ap.add_argument("--mparts", type=int, default=3)
    ap.add_argument("--psleep", type=int, default=0)
    ap.add_argument("--cprio", type=int, default=0)
    ap.add_argument("--cdelay", type=int, default=0)
    ap.add_argument("--xdelay", type=int, default=0)
    ap.add_argument("--xfl", default="")
    ap.add_argument("--pollfl", default="sc1")
    ap.add_argument("--wfl", default="")
    ap.add_argument("--ysplit", default="4,3,3")
    ap.add_argument("--noload", type=int, default=0)
    ap.add_argument("--lsleep", type=int, default=1)
    ap.add_argument("--csleep", type=int, default=0)
    ap.add_argument("--krows", default="0,1376")
    ap.add_argument("--lprio", type=int, default=0)
    ap.add_argument("--stampw", type=int, default=0)
    ap.add_argument("--ovstage", type=int, default=7)
    ap.add_argument("--sched", default=DEF)
    ap.add_argument("--tail", default="J W0b W1a B8 W1b L8 W2a C10 W2b W3 Z L9")
    a = ap.parse_args()
    open(a.o, "w").write(gen(a))
```
